```python
import torch

def _softmax(x, axis=-1):
    return torch.softmax(x, dim=axis)
def _gelu(x):
    return torch.nn.functional.gelu(x, approximate="tanh")
def _silu(x):
    return torch.nn.functional.silu(x)
def _sigmoid(x):
    return torch.sigmoid(x)
def _layernorm(x, axis=-1, eps=1e-5):
    m = x.mean(dim=axis, keepdim=True)
    v = x.var(dim=axis, keepdim=True, unbiased=False)
    return (x - m) / torch.sqrt(v + eps)
def _scatter_add(tgt, idx, src, axis=0):
    return tgt.clone().index_add_(axis, idx, src)
def _segment_sum(src, seg, n):
    out = torch.zeros((n,) + src.shape[1:], dtype=src.dtype)
    return out.index_add_(0, seg, src)
def _pad(x, pw):
    flat = tuple(v for pair in reversed(pw) for v in pair)
    return torch.nn.functional.pad(x, flat)

kernel_name = 'parallel_sum__ssm_conv_s5__swiglu_ffn__prompt'

def setup_inputs():

    _w = (lambda a: (lambda t: t.to(torch.bfloat16) if t.is_floating_point() else t)(torch.as_tensor(a)))
    def _A_setup():
        B, S, D = 1, 2048, 1024
        P = D
        Lambda_re = -0.5 * (lambda _x: torch.exp(torch.as_tensor(_x)))((lambda *s: torch.randn(*s, dtype=torch.bfloat16) * 0.8)(P))
        Lambda_im = (lambda *s: torch.randn(*s, dtype=torch.bfloat16) * 0.8)(P) * 1.0
        B_re = (lambda *s: torch.randn(*s, dtype=torch.bfloat16) * 1.6)(P, D) * (D ** -0.5)
        B_im = (lambda *s: torch.randn(*s, dtype=torch.bfloat16) * 1.6)(P, D) * (D ** -0.5)
        C_re = (lambda *s: torch.randn(*s, dtype=torch.bfloat16) * 1.6)(D, P) * (P ** -0.5)
        C_im = (lambda *s: torch.randn(*s, dtype=torch.bfloat16) * 1.6)(D, P) * (P ** -0.5)
        log_dt = (lambda *s: torch.randn(*s, dtype=torch.bfloat16) * 0.8)(P) * 0.3 - 2.0
        Dskip = (lambda *s: torch.randn(*s, dtype=torch.bfloat16) * 0.4)(D)
        return {
            "x": _w((lambda *s: torch.randn(*s, dtype=torch.bfloat16) * 0.05)(B, S, D)),
            "Lambda_re": _w(Lambda_re),
            "Lambda_im": _w(Lambda_im),
            "B_re": _w(B_re),
            "B_im": _w(B_im),
            "C_re": _w(C_re),
            "C_im": _w(C_im),
            "log_dt": _w(log_dt),
            "Dskip": _w(Dskip),
        }
    _A_in = _A_setup()

    def _B_setup():
        B, S, D, F = 1, 2048, 1024, 3584
        return {
            "x": _w((lambda *s: torch.randn(*s, dtype=torch.bfloat16) * 0.05)(B, S, D)),
            "w_gate": _w((lambda *s: torch.randn(*s, dtype=torch.bfloat16) * 0.05)(D, F)),
            "w_up": _w((lambda *s: torch.randn(*s, dtype=torch.bfloat16) * 0.05)(D, F)),
            "w_down": _w((lambda *s: torch.randn(*s, dtype=torch.bfloat16) * 0.05)(F, D)),
        }
    _B_in = _B_setup()

    return {
        "A_x": _A_in["x"],
        "A_Lambda_re": _A_in["Lambda_re"],
        "A_Lambda_im": _A_in["Lambda_im"],
        "A_B_re": _A_in["B_re"],
        "A_B_im": _A_in["B_im"],
        "A_C_re": _A_in["C_re"],
        "A_C_im": _A_in["C_im"],
        "A_log_dt": _A_in["log_dt"],
        "A_Dskip": _A_in["Dskip"],
        "B_x": _B_in["x"],
        "B_w_gate": _B_in["w_gate"],
        "B_w_up": _B_in["w_up"],
        "B_w_down": _B_in["w_down"],
    }

def reference(A_x, A_Lambda_re, A_Lambda_im, A_B_re, A_B_im, A_C_re, A_C_im, A_log_dt, A_Dskip, B_x, B_w_gate, B_w_up, B_w_down):
    def _A_ref(x, Lambda_re, Lambda_im, B_re, B_im, C_re, C_im, log_dt, Dskip):
        Bsz, L, H = x.shape
        Lam = Lambda_re + 1j * Lambda_im
        Bmat = B_re + 1j * B_im
        Cmat = C_re + 1j * C_im
        dt = torch.exp(log_dt)
        Lam_bar = torch.exp(dt * Lam)
        B_bar = ((Lam_bar - 1.0) / Lam)[:, None] * Bmat
        Bu = torch.einsum("bld,pd->blp", x + 0j, B_bar)
        h = torch.zeros_like(Bu[:, 0, :])
        hs = []
        for t in range(L):
            h = Lam_bar[None, :] * h + Bu[:, t, :]
            hs.append(h)
        hseq = torch.stack(hs, 1)
        y = 2.0 * torch.einsum("blp,dp->bld", hseq, Cmat).real + x * Dskip[None, None, :]
        return y

    def _B_ref(x, w_gate, w_up, w_down):
        g = _silu(x @ w_gate)
        u = x @ w_up
        return (g * u) @ w_down

    x = A_x
    xn = _layernorm(x, axis=-1)
    return x + _A_ref(xn, A_Lambda_re, A_Lambda_im, A_B_re, A_B_im, A_C_re, A_C_im, A_log_dt, A_Dskip) + _B_ref(xn, B_w_gate, B_w_up, B_w_down)
```

```python
import re

REG_RE = re.compile(r"\b([vas])\[(\d+):(\d+)\]|\b([vas])(\d+)\b|\b(vcc|exec|m0|scc)\b")
TRANS = ("v_exp_f32", "v_log_f32", "v_rcp_f32", "v_rsq_f32", "v_sqrt_f32", "v_sin_f32", "v_cos_f32")


def regs_of(op):
    out = set()
    for m in REG_RE.finditer(op):
        if m.group(1):
            out |= {(m.group(1), i) for i in range(int(m.group(2)), int(m.group(3)) + 1)}
        elif m.group(4):
            out.add((m.group(4), int(m.group(5))))
        else:
            out.add((m.group(6), 0))
    return out


def split_ops(rest):
    ops, depth, cur = [], 0, ""
    for ch in rest:
        if ch == "[":
            depth += 1
        if ch == "]":
            depth -= 1
        if ch == "," and depth == 0:
            ops.append(cur.strip())
            cur = ""
        else:
            cur += ch
    if cur.strip():
        ops.append(cur.strip())
    return ops


class Ins:
    def __init__(self, text):
        self.text = text
        t = text.split(";")[0].strip()
        self.label = t.endswith(":")
        self.directive = t.startswith(".") or not t
        parts = t.split(None, 1)
        self.op = parts[0] if parts else ""
        rest = parts[1] if len(parts) > 1 else ""
        rest = re.sub(r"(op_sel|op_sel_hi|neg_lo|neg_hi|quad_perm):\[[^\]]*\]", "", rest)
        ops = split_ops(rest)
        self.w, self.r, self.srcc, self.data = set(), set(), set(), set()
        o = self.op
        self.mfma = o.startswith("v_mfma")
        self.valu = o.startswith("v_") and not self.mfma
        self.trans = o.replace("_e32", "").replace("_e64", "") in TRANS
        self.dpp = "_dpp" in o
        self.perm = o.startswith("v_permlane")
        self.lane = o.startswith("v_readlane") or o.startswith("v_readfirstlane")
        self.ds = o.startswith("ds_")
        self.vmem = o.startswith("buffer_") or o.startswith("global_")
        self.salu = o.startswith("s_")
        self.dma = self.vmem and (" lds" in t or "_lds_" in o)
        self.wide_store = self.vmem and "store" in o and ("x4" in o or "x3" in o)
        self.states = 1
        if o == "s_nop":
            self.states = int(ops[0]) + 1
        if self.label or self.directive:
            self.states = 0
            return
        R = [regs_of(x) for x in ops]
        allr = set().union(*R) if R else set()
        if self.mfma:
            self.w = R[0]
            self.r = R[1] | R[2] | R[3]
            self.srcc = R[3]
            self.ab = R[1] | R[2]
        elif self.valu:
            if self.perm:
                self.w = allr
                self.r = allr
            elif "_co_" in o:
                self.w = R[0] | R[1]
                self.r = set().union(*R[2:])
            else:
                self.w = R[0]
                self.r = set().union(*R[1:]) if len(R) > 1 else set()
                if "fmac" in o or "dot2c" in o or self.dpp or "writelane" in o:
                    self.r |= R[0]
        elif self.ds:
            if "read" in o or "bpermute" in o:
                self.w = R[0]
                self.r = set().union(*R[1:])
            else:
                self.r = allr
        elif self.vmem:
            if self.dma:
                self.r = allr | {("m0", 0)}
            elif "load" in o:
                self.w = R[0]
                self.r = set().union(*R[1:])
            elif o.startswith("buffer_store"):
                self.r = allr
                self.data = R[0]
            elif o.startswith("global_store"):
                self.r = allr
                self.data = R[1]
            else:
                self.r = allr
        elif self.salu:
            if o.startswith("s_cmp") or o.startswith("s_cbranch") or o in ("s_waitcnt", "s_barrier", "s_nop", "s_branch", "s_endpgm", "s_setprio", "s_sleep"):
                self.r = allr
            else:
                self.w = R[0] if R else set()
                self.r = set().union(*R[1:]) if len(R) > 1 else set()


def is_vec(r):
    return r[0] in "va" and len(r[0]) == 1


def is_sg(r):
    return r[0] in ("s", "vcc")


def need(p, c):
    n = 0
    if p.valu:
        wv = {x for x in p.w if is_vec(x)}
        ws = {x for x in p.w if is_sg(x)}
        if wv & c.r:
            if c.dpp or c.perm or c.mfma:
                n = max(n, 2)
            if c.lane:
                n = max(n, 1)
            if p.trans and c.valu and not c.trans:
                n = max(n, 1)
            if p.trans and (c.vmem or c.ds):
                n = max(n, 1)
        if ws & c.r:
            if c.valu:
                n = max(n, 4 if c.lane or "writelane" in c.op else 2)
            if c.vmem:
                n = max(n, 5)
            if c.salu:
                n = max(n, 1)
    if p.mfma:
        if c.mfma:
            if p.w & c.ab:
                n = max(n, 8)
            elif p.w & c.srcc and p.w != c.srcc:
                n = max(n, 6)
        elif (p.w & (c.r | c.w)) and (c.valu or c.vmem or c.ds):
            n = max(n, 8)
        if c.valu and (p.srcc & c.w):
            n = max(n, 3)
    if p.wide_store and (p.data & c.w):
        n = max(n, 2)
    if p.salu and ("m0", 0) in p.w and c.dma:
        n = max(n, 1)
    return n


def fix_hazards(lines, window=10):
    out, hist, added = [], [], 0
    for text in lines:
        c = Ins(text)
        if c.states == 0:
            out.append(text)
            continue
        dist, pad = 0, 0
        for p in reversed(hist):
            pad = max(pad, need(p, c) - dist)
            dist += p.states
            if dist >= window:
                break
        if pad > 0:
            nop = f"s_nop {pad - 1}"
            out.append(nop)
            hist.append(Ins(nop))
            added += 1
        out.append(text)
        hist.append(c)
        hist = hist[-window - 2:]
    return out, added


def vr(base, n=1, f="v"):
    return f"{f}{base}" if n == 1 else f"{f}[{base}:{base + n - 1}]"


def ar(base, n=1):
    return vr(base, n, "a")


def sr(base, n=1):
    return vr(base, n, "s")
```

```python
import sys
from asmlib import *

NAME = "parallel_sum__ssm_conv_s5__swiglu_ffn__prompt"
WS_XN = 0
WS_A2 = 4 << 20
WS_MB = 28 << 20
WS_FL = (28 << 20) + 65536
WS_ST = 29 << 20
WS_XC = 32 << 20
WS_SZ = 64 << 20
OOB = 0x10000000
A2_WT = 176 * 4096

KA = dict(x=0, lre=8, lim=16, bre=24, bim=32, cre=40, cim=48, ldt=56, dsk=64, wg=80, wu=88, wd=96, out=104, dbg=112, ws=120)

OPT = dict(stamps=0, k1_da=3, k2_da=7, pf=3, w_nt=0, x_nt=1, a2_st="", xn_st="", out_st="")


def fbits(x):
    import struct
    return hex(struct.unpack("<I", struct.pack("<f", x))[0])


class P:
    def __init__(self):
        self.L, self.vq, self.lq = [], [], []

    def __call__(self, *lines):
        for l in lines:
            self.L.extend(x.strip() for x in l.strip().split("\n") if x.strip())

    def vm(self, line, tag=None):
        self.L.append(line)
        self.vq.append(tag)
        assert len(self.vq) <= 63, "vmcnt overflow"

    def ds(self, line, tag=None):
        self.L.append(line)
        self.lq.append(tag)

    @staticmethod
    def _cnt(q, pred):
        idx = max([i for i, t in enumerate(q) if pred(t)], default=-1)
        if idx < 0:
            return None
        n = len(q) - 1 - idx
        del q[: idx + 1]
        return n

    def wait(self, v=None, l=None):
        parts = []
        if v:
            n = self._cnt(self.vq, v)
            if n is not None:
                parts.append(f"vmcnt({n})")
        if l:
            n = self._cnt(self.lq, l)
            if n is not None:
                assert n <= 15
                parts.append(f"lgkmcnt({n})")
        if parts:
            self.L.append("s_waitcnt " + " ".join(parts))

    def srd(self, d, src, size):
        self(f"s_mov_b32 s{d}, s{src}", f"s_mov_b32 s{d+1}, s{src+1}", f"s_mov_b32 s{d+2}, {hex(size)}", f"s_mov_b32 s{d+3}, 0x20000")


ALL = lambda t: True


def stamp(p, i):
    if OPT["stamps"]:
        p(f"s_memrealtime s[{84+2*i}:{85+2*i}]")


def stamp_store(p, kidx, srd, swave, nw, tmp):
    if not OPT["stamps"]:
        return
    p("s_waitcnt vmcnt(0)")
    stamp(p, 7)
    p("s_waitcnt lgkmcnt(0)")
    for i in range(8):
        p(f"v_mov_b32 v{tmp+i}, s{84+2*i}")
    p(f"s_mul_i32 s3, s2, {nw}", f"s_add_u32 s3, s3, s{swave}", "s_lshl_b32 s3, s3, 5", f"s_add_u32 s3, s3, {WS_ST + kidx*(1<<17)}",
      f"v_mov_b32 v{tmp+8}, 0")
    p(f"buffer_store_dwordx4 v[{tmp}:{tmp+3}], v{tmp+8}, s[{srd}:{srd+3}], s3 offen",
      f"buffer_store_dwordx4 v[{tmp+4}:{tmp+7}], v{tmp+8}, s[{srd}:{srd+3}], s3 offen offset:16")


def wave_sum(p, v, t):
    for m in ("quad_perm:[1,0,3,2]", "quad_perm:[2,3,0,1]", "row_half_mirror", "row_mirror"):
        p(f"v_add_f32_dpp v{v}, v{v}, v{v} {m} row_mask:0xf bank_mask:0xf")
    for sw in ("v_permlane16_swap_b32", "v_permlane32_swap_b32"):
        p(f"v_mov_b32 v{t}, v{v}", f"{sw} v{v}, v{t}", f"v_add_f32 v{v}, v{v}, v{t}")


def rbf(p, d, s):
    p(f"v_cvt_pk_bf16_f32 v{d}, v{s}, v{s}", f"v_lshlrev_b32 v{d}, 16, v{d}")


def k0():
    p = P()
    stamp(p, 0)
    p("s_cmp_ge_u32 s2, 256", "s_cbranch_scc1 K0_END")
    p(f"s_load_dwordx2 s[20:21], s[0:1], {KA['x']}", f"s_load_dwordx2 s[22:23], s[0:1], {KA['ws']}")
    p("v_lshrrev_b32 v1, 6, v0", "v_readfirstlane_b32 s16, v1", "v_and_b32 v2, 63, v0", "v_lshlrev_b32 v3, 4, v2")
    p("s_lshr_b32 s17, s2, 3", "s_bfe_u32 s18, s2, 0x20001", "s_and_b32 s19, s2, 1")
    p("s_lshl_b32 s24, s19, 3", "s_add_u32 s24, s24, s16")
    p("s_lshr_b32 s25, s24, 2", "s_lshl_b32 s25, s25, 4", "s_and_b32 s26, s24, 3", "s_add_u32 s25, s25, s26",
      "s_lshl_b32 s26, s18, 2", "s_add_u32 s25, s25, s26", "s_lshl_b32 s26, s17, 6", "s_add_u32 s25, s25, s26",
      "s_lshl_b32 s25, s25, 11")
    p("s_waitcnt lgkmcnt(0)")
    p.srd(8, 20, 4 << 20)
    p.srd(4, 22, WS_SZ)
    nt = "nt" if OPT["x_nt"] else ""
    p(f"buffer_load_dwordx4 v[8:11], v3, s[8:11], s25 offen {nt}", f"buffer_load_dwordx4 v[12:15], v3, s[8:11], s25 offen offset:1024 {nt}")
    p("s_cmp_gt_u32 s16, 1", "s_cbranch_scc1 K0_NOINIT",
      "s_sub_u32 s27, s16, 1", "v_mov_b32 v4, s27", "s_lshl_b32 s27, s16, 16", "s_lshl_b32 s28, s2, 8", "s_add_u32 s27, s27, s28",
      f"s_add_u32 s27, s27, {WS_MB}", "v_lshlrev_b32 v5, 2, v2",
      "buffer_store_dword v4, v5, s[4:7], s27 offen", "K0_NOINIT:")
    p("v_and_b32 v4, 7, v2", "v_xor_b32 v4, s16, v4", "v_lshlrev_b32 v4, 4, v4", "v_lshl_add_u32 v4, v2, 7, v4")
    p("v_lshrrev_b32 v5, 3, v0", "v_xor_b32 v6, v5, v0", "v_and_b32 v6, 7, v6", "v_lshlrev_b32 v6, 4, v6", "v_lshl_add_u32 v6, v5, 7, v6")
    p("v_lshrrev_b32 v7, 2, v5", "v_lshlrev_b32 v7, 12, v7", "v_and_b32 v5, 3, v5", "v_lshl_add_u32 v7, v5, 8, v7",
      "v_and_b32 v5, 7, v0", "v_lshl_add_u32 v7, v5, 4, v7")
    p("s_lshl_b32 s27, s17, 17", "s_lshl_b32 s28, s18, 10", "s_add_u32 s27, s27, s28", "s_lshl_b32 s28, s19, 7", "s_add_u32 s27, s27, s28",
      "s_add_u32 s28, s27, 0x10000", "s_mov_b32 s29, 0xffff0000")
    p("s_waitcnt vmcnt(0)")
    stamp(p, 1)
    F = 16
    for i in range(8):
        p(f"v_lshlrev_b32 v{F+2*i}, 16, v{8+i}", f"v_and_b32 v{F+2*i+1}, s29, v{8+i}")
    T = 32
    for i in range(4):
        p(f"v_pk_add_f32 v[{T+2*i}:{T+2*i+1}], v[{F+4*i}:{F+4*i+1}], v[{F+4*i+2}:{F+4*i+3}]")
    p(f"v_pk_add_f32 v[{T}:{T+1}], v[{T}:{T+1}], v[{T+2}:{T+3}]", f"v_pk_add_f32 v[{T+4}:{T+5}], v[{T+4}:{T+5}], v[{T+6}:{T+7}]",
      f"v_pk_add_f32 v[{T}:{T+1}], v[{T}:{T+1}], v[{T+4}:{T+5}]", f"v_add_f32 v48, v{T}, v{T+1}")
    wave_sum(p, 48, 49)
    p(f"v_mul_f32 v48, {fbits(1/1024)}, v48")
    for i in range(8):
        p(f"v_pk_add_f32 v[{T+2*i}:{T+2*i+1}], v[{F+2*i}:{F+2*i+1}], v[48:49] op_sel_hi:[1,0] neg_lo:[0,1] neg_hi:[0,1]")
    p(f"v_pk_mul_f32 v[50:51], v[{T}:{T+1}], v[{T}:{T+1}]", f"v_pk_mul_f32 v[52:53], v[{T+2}:{T+3}], v[{T+2}:{T+3}]")
    for i in range(2, 8):
        d = 50 + 2 * (i & 1)
        p(f"v_pk_fma_f32 v[{d}:{d+1}], v[{T+2*i}:{T+2*i+1}], v[{T+2*i}:{T+2*i+1}], v[{d}:{d+1}]")
    p("v_pk_add_f32 v[50:51], v[50:51], v[52:53]", "v_add_f32 v50, v50, v51")
    wave_sum(p, 50, 51)
    p(f"v_mul_f32 v50, {fbits(1/1024)}, v50")
    rbf(p, 48, 48)
    rbf(p, 50, 50)
    p(f"v_add_f32 v50, {fbits(1e-5)}, v50")
    rbf(p, 50, 50)
    p("v_sqrt_f32 v50, v50")
    rbf(p, 50, 50)
    p("v_rcp_f32 v50, v50")
    for i in range(8):
        p(f"v_pk_add_f32 v[{T+2*i}:{T+2*i+1}], v[{F+2*i}:{F+2*i+1}], v[48:49] op_sel_hi:[1,0] neg_lo:[0,1] neg_hi:[0,1]")
    for i in range(8):
        p(f"v_cvt_pk_bf16_f32 v{8+i}, v{T+2*i}, v{T+2*i+1}")
    for i in range(8):
        p(f"v_lshlrev_b32 v{F+2*i}, 16, v{8+i}", f"v_and_b32 v{F+2*i+1}, s29, v{8+i}")
    for i in range(8):
        p(f"v_pk_mul_f32 v[{F+2*i}:{F+2*i+1}], v[{F+2*i}:{F+2*i+1}], v[50:51] op_sel_hi:[1,0]")
    for i in range(8):
        p(f"v_cvt_pk_bf16_f32 v{8+i}, v{F+2*i}, v{F+2*i+1}")
    p("ds_write_b128 v4, v[8:11]", "ds_write_b128 v4, v[12:15] offset:8192", "s_waitcnt lgkmcnt(0)", "s_barrier",
      "ds_read_b128 v[16:19], v6", "ds_read_b128 v[20:23], v6 offset:8192")
    st = OPT["xn_st"]
    p("s_waitcnt lgkmcnt(1)", f"buffer_store_dwordx4 v[16:19], v7, s[4:7], s27 offen {st}",
      "s_waitcnt lgkmcnt(0)", f"buffer_store_dwordx4 v[20:23], v7, s[4:7], s28 offen {st}")
    stamp(p, 2)
    stamp_store(p, 0, 4, 16, 8, 32)
    p("K0_END:", "s_endpgm")
    return p.L


def gemm(p, nsteps, nfrag, stage_len, reads, mfma, vmops, PF):
    tot = nsteps * nfrag

    def first_of_stage(g):
        s, n = divmod(g, nfrag)
        return n == 0 and s % stage_len == 0

    def do_reads(g):
        s, n = divmod(g, nfrag)
        return [(l, g) for l in reads(s, n, g)]

    p.wait(v=lambda t: t == ("B", 0))
    p("s_barrier")
    for g in range(PF):
        for l, t in do_reads(g):
            p.ds(l, t)
    for s in range(nsteps):
        ops = vmops(s)
        barfrag = nfrag - PF if (s + 1) % stage_len == 0 and s + 1 < nsteps else None
        slots = [n for n in range(nfrag) if n != barfrag]
        place = {}
        for i, o in enumerate(ops):
            place.setdefault(slots[i * len(slots) // len(ops)], []).append(o)
        for n in range(nfrag):
            g = s * nfrag + n
            nxt = g + PF
            bar = nxt < tot and first_of_stage(nxt)
            stg = (nxt // nfrag) // stage_len
            p.wait(v=lambda t: (n == 0 and t == ("A", s)) or (bar and t == ("B", stg)), l=lambda t: t == g)
            gaps = [[], [], [], []]
            rd = do_reads(nxt) if nxt < tot else []
            o = 0
            if bar:
                gaps[0].append(("x", "s_barrier", None))
                o = 1
            for i, (l, t) in enumerate(rd):
                gaps[o + i].append(("ds", l, t))
            for i, (pre, line, tag) in enumerate(place.get(n, [])):
                assert i < 2
                for x in pre:
                    gaps[1 + i].append(("x", x, None))
                gaps[2 + i].append(("vm", line, tag))
            for j in range(4):
                p(mfma(s, n, j, g))
                for kind, l, t in gaps[j]:
                    if kind == "x":
                        p(l)
                    elif kind == "ds":
                        p.ds(l, t)
                    else:
                        p.vm(l, t)


def cmul(p, d, a, b, t):
    p(f"v_mul_f32 v{d}, v{a}, v{b}", f"v_mul_f32 v{d+1}, v{a}, v{b+1}",
      f"v_fma_f32 v{d}, -v{a+1}, v{b+1}, v{d}", f"v_fmac_f32 v{d+1}, v{a+1}, v{b}")


def cfma2(p, items):
    for d, l, z, c in items:
        p(f"v_fma_f32 v{d[0]}, v{l[0]}, v{z[0]}, v{c[0]}" if d[0] != c[0] else f"v_fmac_f32 v{d[0]}, v{l[0]}, v{z[0]}")
        p(f"v_fma_f32 v{d[1]}, v{l[0]}, v{z[1]}, v{c[1]}" if d[1] != c[1] else f"v_fmac_f32 v{d[1]}, v{l[0]}, v{z[1]}")
    for d, l, z, c in items:
        p(f"v_fma_f32 v{d[0]}, -v{l[1]}, v{z[1]}, v{d[0]}", f"v_fmac_f32 v{d[1]}, v{l[1]}, v{z[0]}")


def pr(x):
    return (x, x + 1)


K1_SLOT = 36864
K1_Z = 4 * K1_SLOT
K1_LDS = K1_Z + 2048


def k1():
    p = P()
    DA, PF = OPT["k1_da"], OPT["pf"]
    NAB, NBB = DA + 1, PF + 1
    assert NAB <= 8 and NBB <= 4
    V_M1, V_C, V_T, V_S, V_G = 17, 18, 62, 80, 144
    A_U, A_A, A_B = 0, 112, 240
    CN = dict(l1=0, l16=1, l32=2, l64=3, l256=4, l512=5, l1024=6, m2=7, pg=8, pw=9, cf=10)
    C = lambda name, cb: V_C + (CN[name] * 2 + cb) * 2
    S_W, S_RB, S_CT, S_WT = 16, 17, 18, 19
    S_A, S_WO, S_BO, S_MF, S_MS = 40, 41, 42, 43, 44

    stamp(p, 0)
    p("s_cmp_ge_u32 s2, 256", "s_cbranch_scc1 K1_END")
    p(f"s_load_dwordx4 s[20:23], s[0:1], {KA['lre']}", f"s_load_dwordx4 s[24:27], s[0:1], {KA['bre']}",
      f"s_load_dwordx2 s[32:33], s[0:1], {KA['ldt']}", f"s_load_dwordx4 s[28:31], s[0:1], {KA['wg']}",
      f"s_load_dwordx2 s[34:35], s[0:1], {KA['ws']}")
    p("v_lshrrev_b32 v1, 6, v0", f"v_readfirstlane_b32 s{S_W}, v1", "v_and_b32 v0, 63, v0", "v_lshlrev_b32 v1, 4, v0")
    p("s_and_b32 s36, s2, 1", "s_lshl_b32 s36, s36, 2", "s_bfe_u32 s37, s2, 0x20003", f"s_add_u32 s{S_RB}, s36, s37",
      "s_bfe_u32 s36, s2, 0x20001", "s_lshl_b32 s36, s36, 3", "s_lshr_b32 s37, s2, 5", f"s_add_u32 s{S_CT}, s36, s37",
      f"s_lshl_b32 s36, s{S_RB}, 2", f"s_add_u32 s{S_WT}, s36, s{S_W}")
    t = V_T
    p(f"s_and_b32 s36, s{S_CT}, 1", "s_lshl_b32 s36, s36, 1")
    for i in range(7):
        p(f"v_add_u32 v{t}, {64*i}, v0", f"v_mul_u32_u24 v{t+1}, 4682, v{t}", f"v_lshrrev_b32 v{t+1}, 16, v{t+1}",
          f"v_mul_u32_u24 v{t+2}, 14, v{t+1}", f"v_sub_u32 v{t+2}, v{t}, v{t+2}", f"v_add_u32 v{t+2}, s36, v{t+2}",
          f"v_subrev_u32 v{t+3}, 14, v{t+2}", f"v_min_u32 v{t+2}, v{t+2}, v{t+3}",
          f"v_bfe_u32 v{t+3}, v{t+1}, 2, 2", f"v_lshlrev_b32 v{t+3}, 3, v{t+3}", f"v_and_b32 v{t+4}, 3, v{t+1}", f"v_add_u32 v{t+3}, v{t+3}, v{t+4}",
          f"v_lshrrev_b32 v{t+4}, 4, v{t+1}", f"v_lshl_add_u32 v{t+3}, v{t+4}, 2, v{t+3}",
          f"v_mul_u32_u24 v{t+3}, 7168, v{t+3}", f"v_lshl_add_u32 v{2+i}, v{t+2}, 4, v{t+3}")
        if i % 4:
            p(f"v_subrev_u32 v{2+i}, {(i%4)*1024}, v{2+i}")
    for i in range(2):
        p(f"v_lshrrev_b32 v{t}, 3, v0", f"v_add_u32 v{t}, {8*i}, v{t}", f"v_lshrrev_b32 v{t+1}, 1, v{t}", f"v_xor_b32 v{t+1}, v{t+1}, v0",
          f"v_and_b32 v{t+1}, 7, v{t+1}", f"v_lshlrev_b32 v{t+1}, 4, v{t+1}", f"v_lshl_add_u32 v{9+i}, v{t}, 11, v{t+1}")
        if i:
            p(f"v_subrev_u32 v{9+i}, 1024, v{9+i}")
    p(f"s_and_b32 s36, s{S_W}, 1", f"s_mul_i32 s{S_WO}, s36, {32*7168}", f"s_mul_i32 s37, s{S_CT}, 224", f"s_add_u32 s{S_WO}, s{S_WO}, s37",
      f"s_lshl_b32 s37, s{S_CT}, 1", "s_add_u32 s37, s37, s36", f"s_lshl_b32 s{S_BO}, s37, 15",
      f"s_mul_i32 s{S_MF}, s{S_W}, 7168", f"s_lshl_b32 s{S_MS}, s{S_W}, 11", f"s_add_u32 s{S_MS}, s{S_MS}, 28672",
      f"s_lshl_b32 s{S_A}, s{S_WT}, 17")
    p(f"v_and_b32 v{t}, 15, v0", f"s_lshl_b32 s36, s{S_CT}, 5", f"v_add_u32 v{t}, s36, v{t}", f"v_lshlrev_b32 v{t}, 1, v{t}")
    p("s_waitcnt lgkmcnt(0)")
    stamp(p, 1)
    p.srd(4, 34, WS_SZ)
    p(f"s_cmp_ge_u32 s{S_W}, 2", "s_cselect_b32 s8, s30, s28", "s_cselect_b32 s9, s31, s29", "s_cselect_b32 s12, s26, s24", "s_cselect_b32 s13, s27, s25",
      f"s_mov_b32 s10, {1024*3584*2}", "s_mov_b32 s11, 0x20000", f"s_mov_b32 s14, {1024*1024*2}", "s_mov_b32 s15, 0x20000")
    RAW = V_T + 8
    for cb in range(2):
        for k, base in enumerate((20, 22, 32)):
            p.vm(f"global_load_ushort v{RAW+3*cb+k}, v{t}, s[{base}:{base+1}] offset:{32*cb}", "C")

    nt = "nt" if OPT["w_nt"] else ""

    def dma_ops(st):
        slot = (st % 4) * K1_SLOT
        f = lambda i: f"buffer_load_dwordx4 v{2+i}, s[8:11], s{S_WO} offen offset:{(i%4)*1024} {nt} lds"
        b = lambda i: f"buffer_load_dwordx4 v{9+i}, s[12:15], s{S_BO} offen offset:{i*1024} {nt} lds"
        tag = ("B", st)
        adv_w = [f"s_add_u32 s{S_WO}, s{S_WO}, {64*7168}"] if st else []
        adv_b = [f"s_add_u32 s{S_BO}, s{S_BO}, 128"] if st else []
        h0 = [(adv_w + [f"s_add_u32 m0, s{S_MF}, {slot}"], f(0), tag), ([], f(1), tag), ([], f(2), tag), ([], f(3), tag),
              (adv_b + [f"s_add_u32 m0, s{S_MS}, {slot}"], b(0), tag)]
        h1 = [([], b(1), tag), ([f"s_add_u32 m0, s{S_MF}, {slot+4096}"], f(4), tag), ([], f(5), tag), ([], f(6), tag)]
        return h0, h1

    Areg = lambda s, j: ar(A_A + ((s % NAB) * 4 + j) * 4, 4)

    def a_ops(s):
        adv = [f"s_add_u32 s{S_A}, s{S_A}, 4096"] if s else []
        return [(adv if j == 0 else [], f"buffer_load_dwordx4 {Areg(s,j)}, v1, s[4:7], s{S_A} offen offset:{j*1024}", ("A", s)) for j in range(4)]

    def issue(ops):
        for pre, line, tag in ops:
            p(*pre)
            p.vm(line, tag)

    h0, h1 = dma_ops(0)
    issue(h0 + h1)
    issue(a_ops(0))
    issue(a_ops(1))
    h0, h1 = dma_ops(1)
    issue(h0 + h1)
    for s in range(2, DA):
        issue(a_ops(s))

    p(f"v_lshrrev_b32 v{t}, 2, v0", f"v_mul_u32_u24 v{t}, 224, v{t}", f"v_and_b32 v{t+1}, 3, v0", f"v_lshl_add_u32 v11, v{t+1}, 3, v{t}",
      f"v_add_u32 v12, {2*K1_SLOT}, v11")
    p(f"v_and_b32 v{t}, 15, v0", f"v_lshrrev_b32 v{t+1}, 4, v0", f"v_lshrrev_b32 v{t+2}, 1, v{t}", f"v_xor_b32 v{t+1}, v{t+1}, v{t+2}",
      f"v_lshlrev_b32 v{t+1}, 4, v{t+1}", f"v_lshl_add_u32 v{t+1}, v{t}, 7, v{t+1}", f"v_add_u32 v13, 28672, v{t+1}", f"v_xor_b32 v14, 64, v13",
      f"v_add_u32 v15, {2*K1_SLOT}, v13", f"v_add_u32 v16, {2*K1_SLOT}, v14")
    for i in range(4):
        p(f"v_mov_b32 v{t+i}, 0")
    p(f"v_add_u32 v{t+4}, {K1_Z}, v1")
    p.ds(f"ds_write_b128 v{t+4}, v[{t}:{t+3}]", "z")

    p.wait(v=lambda x: x == "C", l=ALL)
    L2E = fbits(1.4426950408889634)
    p("v_and_b32 v%d, 16, v0" % t, f"v_cmp_ne_u32 s[46:47], 0, v{t}", f"v_and_b32 v{t}, 32, v0", f"v_cmp_ne_u32 s[48:49], 0, v{t}",
      f"s_bitcmp1_b32 s{S_W}, 0", "s_cselect_b64 s[50:51], -1, 0", f"s_bitcmp1_b32 s{S_W}, 1", "s_cselect_b64 s[52:53], -1, 0",
      f"v_cndmask_b32 v{V_M1}, 0, 1.0, s[46:47]")
    for cb in range(2):
        lr, li, ld = RAW + 3 * cb, RAW + 3 * cb + 1, RAW + 3 * cb + 2
        l1 = C("l1", cb)
        p(f"v_lshlrev_b32 v{lr}, 16, v{lr}", f"v_lshlrev_b32 v{li}, 16, v{li}", f"v_lshlrev_b32 v{ld}, 16, v{ld}",
          f"v_mul_f32 v{ld}, {L2E}, v{ld}", f"v_exp_f32 v{ld}, v{ld}")
        rbf(p, ld, ld)
        p(f"v_mul_f32 v{t}, v{ld}, v{lr}", f"v_mul_f32 v{t+1}, v{ld}, v{li}",
          f"v_mul_f32 v{t}, {L2E}, v{t}", f"v_exp_f32 v{t}, v{t}",
          f"v_mul_f32 v{t+1}, 0.15915494, v{t+1}", f"v_rndne_f32 v{t+2}, v{t+1}", f"v_sub_f32 v{t+1}, v{t+1}, v{t+2}",
          f"v_cos_f32 v{t+2}, v{t+1}", f"v_sin_f32 v{t+3}, v{t+1}",
          f"v_mul_f32 v{l1}, v{t}, v{t+2}", f"v_mul_f32 v{l1+1}, v{t}, v{t+3}")
        cf = C("cf", cb)
        p(f"v_add_f32 v{t}, -1.0, v{l1}", f"v_mul_f32 v{t+1}, v{lr}, v{lr}", f"v_fmac_f32 v{t+1}, v{li}, v{li}", f"v_rcp_f32 v{t+1}, v{t+1}",
          f"v_mul_f32 v{cf}, v{t}, v{lr}", f"v_fmac_f32 v{cf}, v{l1+1}, v{li}",
          f"v_mul_f32 v{cf+1}, v{l1+1}, v{lr}", f"v_fma_f32 v{cf+1}, -v{t}, v{li}, v{cf+1}",
          f"v_add_f32 v{t+1}, v{t+1}, v{t+1}", f"v_mul_f32 v{cf}, v{cf}, v{t+1}", f"v_mul_f32 v{cf+1}, v{cf+1}, v{t+1}")
        chain = [l1, t, t + 2, t, C("l16", cb), C("l32", cb), C("l64", cb), t + 4, C("l256", cb), C("l512", cb), C("l1024", cb)]
        for a, d in zip(chain, chain[1:]):
            cmul(p, d, a, a, None)
        for (lo, hi, mlo, mhi, dst) in ((C("l16", cb), C("l32", cb), 46, 48, "pg"), (C("l64", cb), t + 4, 50, 52, "pw")):
            p(f"v_cndmask_b32 v{t}, 1.0, v{lo}, s[{mlo}:{mlo+1}]", f"v_cndmask_b32 v{t+1}, 0, v{lo+1}, s[{mlo}:{mlo+1}]",
              f"v_cndmask_b32 v{t+2}, 1.0, v{hi}, s[{mhi}:{mhi+1}]", f"v_cndmask_b32 v{t+3}, 0, v{hi+1}, s[{mhi}:{mhi+1}]")
            cmul(p, C(dst, cb), t, t + 2, None)
            if dst == "pg":
                m2 = C("m2", cb)
                p(f"v_cndmask_b32 v{m2}, 0, v{t}, s[48:49]", f"v_cndmask_b32 v{m2+1}, 0, v{t+1}, s[48:49]")
    stamp(p, 2)

    Breg = lambda g, h=None: ar(A_B + (g % NBB) * 4, 4) if h is None else ar(A_B + (g % NBB) * 4 + 2 * h, 2)
    SS = lambda cb, part, j: V_S + ((cb * 2 + part) * 4 + j) * 4
    GG = lambda b, j: V_G + (b * 4 + j) * 4
    UU = lambda b, j: A_U + (b * 4 + j) * 4

    def reads(s, n, g):
        st, kh = divmod(s, 2)
        slot = st % 4
        so = (slot & 1) * K1_SLOT
        if n < 4:
            cb, part = n >> 1, n & 1
            return [f"ds_read_b128 {Breg(g)}, v{13 + 2*(slot>>1) + kh} offset:{so + (part*2+cb)*2048}"]
        b, m = (n - 4) >> 1, (n - 4) & 1
        return [f"ds_read_b64_tr_b16 {Breg(g,h)}, v{11 + (slot>>1)} offset:{so + (m*2+kh)*7168 + h*3584 + b*32}" for h in range(2)]

    def mfma(s, n, j, g):
        if n < 4:
            d = vr(SS(n >> 1, n & 1, j), 4)
            a, b = Areg(s, j), Breg(g)
        else:
            bb, m = (n - 4) >> 1, (n - 4) & 1
            d = ar(UU(bb, j), 4) if m else vr(GG(bb, j), 4)
            a, b = Breg(g), Areg(s, j)
        return f"v_mfma_f32_16x16x32_bf16 {d}, {a}, {b}, {d if s else 0}"

    def vmops(s):
        d = dma_ops(s // 2 + 2)[s % 2] if s // 2 + 2 < 16 else []
        a = a_ops(s + DA) if s + DA < 32 else []
        out = []
        while d or a:
            if d:
                out.append(d.pop(0))
            if a:
                out.append(a.pop(0))
        return out

    gemm(p, 32, 18, 2, reads, mfma, vmops, PF)
    stamp(p, 3)

    U = lambda cb, k: (SS(cb, 0, k >> 2) + (k & 3), SS(cb, 1, k >> 2) + (k & 3))
    E0, E1 = V_T, V_T + 4
    cur = [U(0, 0), U(1, 0)]
    for k in range(1, 16):
        dst = E0 if k % 2 else E1
        cfma2(p, [(pr(dst + 2 * cb), pr(C("l1", cb)), cur[cb], U(cb, k)) for cb in range(2)])
        cur = [pr(dst), pr(dst + 2)]
    Ea, Eb, Xc, Xd, Pp = E0, V_T + 4, V_T + 8, V_T + 12, 2
    for i in range(4):
        p(f"v_mov_b32 v{Eb+i}, v{Ea+i}")
    for i in range(4):
        p(f"v_permlane16_swap_b32 v{Ea+i}, v{Eb+i}")
    cfma2(p, [(pr(Xc + 2 * cb), pr(C("l16", cb)), pr(Ea + 2 * cb), pr(Eb + 2 * cb)) for cb in range(2)])
    for i in range(4):
        p(f"v_mov_b32 v{Xd+i}, v{Xc+i}")
    for i in range(4):
        p(f"v_permlane32_swap_b32 v{Xc+i}, v{Xd+i}")
    cfma2(p, [(pr(Xd + 2 * cb), pr(C("l32", cb)), pr(Xc + 2 * cb), pr(Xd + 2 * cb)) for cb in range(2)])
    p("v_and_b32 v10, 15, v0", "v_lshlrev_b32 v10, 4, v10", f"s_lshl_b32 s36, s{S_W}, 8", f"s_add_u32 s36, s36, {K1_Z}", "v_add_u32 v11, s36, v10")
    p.ds(f"ds_write_b128 v11, v[{Xd}:{Xd+3}] offset:768")
    for i in range(4):
        p(f"v_mul_f32 v{Pp+i}, v{V_M1}, v{Ea+i}")
    cfma2(p, [(pr(Pp + 2 * cb), pr(C("m2", cb)), pr(Xc + 2 * cb), pr(Pp + 2 * cb)) for cb in range(2)])
    p.wait(l=ALL)
    p("s_barrier")
    Z0, Z1, Q = V_T, V_T + 4, 6
    p.ds(f"ds_read_b128 v[{Z0}:{Z0+3}], v11", 0)
    p.ds(f"ds_read_b128 v[{Z1}:{Z1+3}], v11 offset:256", 0)
    p.ds(f"ds_read_b128 v[{Q}:{Q+3}], v11 offset:512", 1)
    p(f"s_lshl_b32 s36, s{S_CT}, 3", f"s_add_u32 s36, s36, s{S_RB}", "s_lshl_b32 s36, s36, 8", f"s_add_u32 s45, s36, {WS_MB - 2048}",
      f"s_cmp_eq_u32 s{S_W}, 3", f"s_cselect_b32 s36, 16, 0", f"v_mov_b32 v15, {OOB}", "v_cmp_gt_u32 vcc, s36, v0", "v_cndmask_b32 v12, v15, v10, vcc",
      "v_lshrrev_b32 v16, 4, v0", "v_lshl_add_u32 v13, v16, 9, v10", "v_lshlrev_b32 v16, 1, v16", f"s_sub_u32 s36, 8, s{S_RB}",
      "v_add_u32 v14, 256, v13", "v_cmp_le_u32 vcc, s36, v16", "v_cndmask_b32 v13, v15, v13, vcc",
      "v_add_u32 v16, 1, v16", "v_cmp_le_u32 vcc, s36, v16", "v_cndmask_b32 v14, v15, v14, vcc")
    p.wait(l=lambda x: x == 0)
    cfma2(p, [(pr(Z1 + 2 * cb), pr(C("l64", cb)), pr(Z0 + 2 * cb), pr(Z1 + 2 * cb)) for cb in range(2)])
    p.wait(l=ALL)
    cfma2(p, [(pr(Q + 2 * cb), pr(C("l64", cb)), pr(Z1 + 2 * cb), pr(Q + 2 * cb)) for cb in range(2)])
    cfma2(p, [(pr(Xd + 2 * cb), pr(C("l64", cb)), pr(Q + 2 * cb), pr(Xd + 2 * cb)) for cb in range(2)])
    for i in range(4):
        p(f"v_min_u32 v{Xd+i}, -2, v{Xd+i}")
    p.vm(f"buffer_store_dwordx4 v[{Xd}:{Xd+3}], v12, s[4:7], s45 offen offset:2048 sc1")
    stamp(p, 4)

    S_O, S_O1, S_RE = 54, 55, 56
    p(f"s_and_b32 s36, s{S_CT}, 7", f"s_lshr_b32 s37, s{S_CT}, 3", "s_mul_i32 s37, s37, 44",
      f"s_mul_i32 s38, s{S_WT}, {A2_WT}", f"s_add_u32 s38, s38, {WS_A2}",
      "s_add_u32 s39, s37, s36", "s_lshl_b32 s39, s39, 12", f"s_add_u32 s{S_RE}, s38, s39",
      "s_mul_i32 s39, s36, 7", "s_add_u32 s39, s39, 33", "s_lshr_b32 s39, s39, 1", "s_add_u32 s39, s39, s37", "s_lshl_b32 s39, s39, 12",
      f"s_add_u32 s{S_O}, s38, s39",
      f"s_movk_i32 s37, {3*4096}", "s_bitcmp1_b32 s36, 0", f"s_cselect_b32 s39, {(-4096 + 8) & 0xffffffff}, s37", f"s_add_u32 s{S_O1}, s{S_O}, s39",
      f"s_mov_b32 s58, {fbits(-1.4426950408889634)}", "s_mov_b32 s59, s58")
    st = OPT["a2_st"]
    TT, TU = V_T, V_T + 8

    def silu_group(blocks, outreg):
        g = [GG(b, j) for b, j in blocks]
        u = [UU(b, j) for b, j in blocks]
        n = len(blocks)
        for q in range(n):
            for h in range(2):
                p(f"v_pk_mul_f32 v[{TT+4*q+2*h}:{TT+4*q+2*h+1}], v[{g[q]+2*h}:{g[q]+2*h+1}], s[58:59]")
        for e in range(4 * n):
            p(f"v_exp_f32 v{TT+e}, v{TT+e}", f"v_accvgpr_read_b32 v{TU+e}, a{u[e>>2]+(e&3)}")
        for e in range(0, 4 * n, 2):
            p(f"v_pk_add_f32 v[{TT+e}:{TT+e+1}], v[{TT+e}:{TT+e+1}], 1.0 op_sel_hi:[1,0]")
        for e in range(0, 4 * n, 2):
            gg = g[e >> 2] + (e & 3)
            p(f"v_rcp_f32 v{TT+e}, v{TT+e}", f"v_rcp_f32 v{TT+e+1}, v{TT+e+1}",
              f"v_pk_mul_f32 v[{TU+e}:{TU+e+1}], v[{TU+e}:{TU+e+1}], v[{gg}:{gg+1}]")
        for e in range(0, 4 * n, 2):
            p(f"v_pk_mul_f32 v[{TU+e}:{TU+e+1}], v[{TU+e}:{TU+e+1}], v[{TT+e}:{TT+e+1}]")
        for e in range(0, 4 * n, 2):
            p(f"v_cvt_pk_bf16_f32 v{outreg+e//2}, v{TU+e}, v{TU+e+1}")

    M0, M1 = GG(0, 0), GG(0, 1)

    def poll_loads():
        p.vm(f"buffer_load_dwordx4 v[{M0}:{M0+3}], v13, s[4:7], s45 offen sc1", "poll")
        p.vm(f"buffer_load_dwordx4 v[{M1}:{M1+3}], v14, s[4:7], s45 offen sc1", "poll")

    for q in range(3):
        for j in range(4):
            o = GG(2 * q + 1, j)
            silu_group([(2 * q, j), (2 * q + 1, j)], o)
            p.vm(f"buffer_store_dwordx4 v[{o}:{o+3}], v1, s[4:7], s{S_O} offen offset:{j*1024} {st}", ("st", q))
        p(f"s_add_u32 s{S_O}, s{S_O}, 4096")
        if q == 1:
            poll_loads()
    for j in range(0, 4, 2):
        o = GG(6, j)
        silu_group([(6, j), (6, j + 1)], o)
        p.vm(f"buffer_store_dwordx2 v[{o}:{o+1}], v1, s[4:7], s{S_O1} offen offset:{j*1024} {st}")
        p.vm(f"buffer_store_dwordx2 v[{o+2}:{o+3}], v1, s[4:7], s{S_O1} offen offset:{(j+1)*1024} {st}")
    stamp(p, 5)

    p("s_mov_b32 s36, 0x20000")
    p.wait(v=lambda x: x == "poll")
    p("K1_POLL:",
      f"v_max3_u32 v{V_T}, v{M0}, v{M0+1}, v{M0+2}", f"v_max3_u32 v{V_T+1}, v{M0+3}, v{M1}, v{M1+1}",
      f"v_max3_u32 v{V_T}, v{V_T}, v{M1+2}, v{M1+3}", f"v_max_u32 v{V_T}, v{V_T}, v{V_T+1}",
      f"v_cmp_eq_u32 vcc, -1, v{V_T}", "s_sub_u32 s36, s36, 1", "s_cbranch_scc1 K1_GOT", "s_nop 2", "s_cbranch_vccz K1_GOT",
      f"buffer_load_dwordx4 v[{M0}:{M0+3}], v13, s[4:7], s45 offen sc1", f"buffer_load_dwordx4 v[{M1}:{M1+3}], v14, s[4:7], s45 offen sc1",
      "s_waitcnt vmcnt(0)", "s_branch K1_POLL", "K1_GOT:")
    stamp(p, 6)
    Ya, Yb = M1, V_T
    cfma2(p, [(pr(M1 + 2 * cb), pr(C("l256", cb)), pr(M0 + 2 * cb), pr(M1 + 2 * cb)) for cb in range(2)])
    for i in range(4):
        p(f"v_mov_b32 v{Yb+i}, v{Ya+i}")
    for i in range(4):
        p(f"v_permlane16_swap_b32 v{Ya+i}, v{Yb+i}")
    cfma2(p, [(pr(Yb + 2 * cb), pr(C("l512", cb)), pr(Ya + 2 * cb), pr(Yb + 2 * cb)) for cb in range(2)])
    for i in range(4):
        p(f"v_mov_b32 v{Ya+i}, v{Yb+i}")
    for i in range(4):
        p(f"v_permlane32_swap_b32 v{Ya+i}, v{Yb+i}")
    cfma2(p, [(pr(Yb + 2 * cb), pr(C("l1024", cb)), pr(Ya + 2 * cb), pr(Yb + 2 * cb)) for cb in range(2)])
    cfma2(p, [(pr(Q + 2 * cb), pr(C("pw", cb)), pr(Yb + 2 * cb), pr(Q + 2 * cb)) for cb in range(2)])
    cfma2(p, [(pr(Pp + 2 * cb), pr(C("pg", cb)), pr(Q + 2 * cb), pr(Pp + 2 * cb)) for cb in range(2)])

    cur = [pr(Pp), pr(Pp + 2)]
    for k in range(16):
        cfma2(p, [(U(cb, k), pr(C("l1", cb)), cur[cb], U(cb, k)) for cb in range(2)])
        cur = [U(0, k), U(1, k)]
    p("v_and_b32 v10, 15, v0", "v_mul_u32_u24 v10, 144, v10", "v_lshrrev_b32 v11, 4, v0", "v_lshl_add_u32 v10, v11, 5, v10",
      f"s_mul_i32 s36, s{S_W}, 9216", "v_add_u32 v10, s36, v10",
      "v_lshlrev_b32 v11, 3, v11", "v_bfe_u32 v12, v0, 2, 2", "v_add_u32 v11, v11, v12", "v_mul_u32_u24 v11, 144, v11",
      "v_and_b32 v12, 3, v0", "v_lshl_add_u32 v11, v12, 5, v11", "v_add_u32 v11, s36, v11")
    H = GG(2, 0)
    for cb in range(2):
        cf = C("cf", cb)
        for half in range(2):
            hr, hi = H + (cb * 2 + half) * 8, H + (cb * 2 + half) * 8 + 4
            for e in range(4):
                k = half * 8 + 2 * e
                zr, zi = U(cb, k)
                a, b = V_T + 4 * e, V_T + 4 * e + 2
                p(f"v_pk_mul_f32 v[{a}:{a+1}], v[{zr}:{zr+1}], v[{cf}:{cf+1}] op_sel:[0,0] op_sel_hi:[1,0]",
                  f"v_pk_mul_f32 v[{b}:{b+1}], v[{zi}:{zi+1}], v[{cf}:{cf+1}] op_sel:[0,0] op_sel_hi:[1,0] neg_lo:[1,0] neg_hi:[1,0]")
            for e in range(4):
                k = half * 8 + 2 * e
                zr, zi = U(cb, k)
                a, b = V_T + 4 * e, V_T + 4 * e + 2
                p(f"v_pk_fma_f32 v[{a}:{a+1}], v[{zi}:{zi+1}], v[{cf}:{cf+1}], v[{a}:{a+1}] op_sel:[0,1,0] op_sel_hi:[1,1,1] neg_lo:[1,0,0] neg_hi:[1,0,0]",
                  f"v_pk_fma_f32 v[{b}:{b+1}], v[{zr}:{zr+1}], v[{cf}:{cf+1}], v[{b}:{b+1}] op_sel:[0,1,0] op_sel_hi:[1,1,1] neg_lo:[1,0,0] neg_hi:[1,0,0]")
            for e in range(4):
                a, b = V_T + 4 * e, V_T + 4 * e + 2
                p(f"v_cvt_pk_bf16_f32 v{hr+e}, v{a}, v{a+1}", f"v_cvt_pk_bf16_f32 v{hi+e}, v{b}, v{b+1}")
            p.ds(f"ds_write_b128 v10, v[{hr}:{hr+3}] offset:{cb*16*144 + half*16}")
            p.ds(f"ds_write_b128 v10, v[{hi}:{hi+3}] offset:{(32+cb*16)*144 + half*16}")
    p.wait(l=ALL)
    for part in range(2):
        for j in range(4):
            for h in range(2):
                d = V_S + (part * 4 + j) * 4 + 2 * h
                p.ds(f"ds_read_b64_tr_b16 v[{d}:{d+1}], v11 offset:{(part*32 + 4*h)*144 + j*8}", (part, j))
    for part in range(2):
        if part:
            p(f"s_add_u32 s{S_RE}, s{S_RE}, {8*4096}")
        for j in range(4):
            d = V_S + (part * 4 + j) * 4
            p.wait(l=lambda x: x == (part, j))
            p.vm(f"buffer_store_dwordx4 v[{d}:{d+3}], v1, s[4:7], s{S_RE} offen offset:{j*1024} {st}")
    stamp_store(p, 1, 4, S_W, 4, V_T)
    p("K1_END:", "s_endpgm")
    return p.L


K2_SLOT = 32768
K2_LDS = 4 * K2_SLOT


def k2():
    p = P()
    DA, PF = OPT["k2_da"], OPT["pf"]
    NAB, NBB = DA + 1, PF + 1
    V_ACC, A_A, A_B = 128, 0, 192
    V_AO, V_DF, V_DS, V_RF, V_RS, V_T = 2, 6, 10, 14, 30, 40
    V_X, V_XN, V_D = 64, 80, 96
    S_W, S_MT, S_NT, S_WT, S_KQ = 16, 17, 18, 19, 36
    S_A, S_B0, S_B1, S_M = 40, 41, 42, 43
    stamp(p, 0)
    p("s_cmp_ge_u32 s2, 256", "s_cbranch_scc1 K2_END")
    p(f"s_load_dwordx2 s[20:21], s[0:1], {KA['x']}", f"s_load_dwordx4 s[24:27], s[0:1], {KA['cre']}",
      f"s_load_dwordx2 s[22:23], s[0:1], {KA['dsk']}", f"s_load_dwordx4 s[28:31], s[0:1], {KA['wd']}",
      f"s_load_dwordx2 s[34:35], s[0:1], {KA['ws']}")
    p("v_lshrrev_b32 v1, 6, v0", f"v_readfirstlane_b32 s{S_W}, v1", "v_and_b32 v0, 63, v0", "v_lshlrev_b32 v1, 4, v0")
    p("s_and_b32 s37, s2, 1", "s_lshl_b32 s37, s37, 2", "s_bfe_u32 s38, s2, 0x20003", f"s_add_u32 s{S_MT}, s37, s38",
      f"s_bfe_u32 s{S_KQ}, s2, 0x20001", f"s_lshr_b32 s{S_NT}, s2, 5",
      f"s_lshl_b32 s37, s{S_MT}, 2", f"s_add_u32 s{S_WT}, s37, s{S_W}")
    t = V_T
    for j in range(4):
        p(f"s_xor_b32 s37, s{S_KQ}, {j}", "s_lshl_b32 s37, s37, 10", f"v_add_u32 v{V_AO+j}, s37, v1")
    p(f"v_lshrrev_b32 v{t}, 4, v0", f"v_and_b32 v{t+1}, 15, v0")
    for i in range(4):
        p(f"v_add_u32 v{t+2}, {4*i}, v{t}", f"v_lshlrev_b32 v{t+3}, 11, v{t+2}")
        if i:
            p(f"v_subrev_u32 v{t+3}, {i*1024}, v{t+3}")
        p(f"v_xor_b32 v{t+4}, v{t+2}, v{t+1}", f"v_lshl_add_u32 v{V_DS+i}, v{t+4}, 4, v{t+3}",
          f"v_and_b32 v{t+2}, 7, v{t+2}", f"v_lshlrev_b32 v{t+2}, 1, v{t+2}", f"v_xor_b32 v{t+4}, v{t+2}, v{t+1}",
          f"v_lshl_add_u32 v{V_DF+i}, v{t+4}, 4, v{t+3}")
    p(f"s_mul_i32 s{S_A}, s{S_WT}, {A2_WT}", f"s_mul_i32 s37, s{S_KQ}, {44*4096}", f"s_add_u32 s{S_A}, s{S_A}, s37", f"s_add_u32 s{S_A}, s{S_A}, {WS_A2}",
      f"s_lshl_b32 s{S_M}, s{S_W}, 13",
      f"s_lshl_b32 s44, s{S_NT}, 18", f"s_lshl_b32 s37, s{S_KQ}, 9", "s_add_u32 s44, s44, s37", f"s_lshl_b32 s37, s{S_W}, 16", "s_add_u32 s44, s44, s37",
      f"s_mul_i32 s45, s{S_KQ}, {896*2048}", "s_add_u32 s45, s45, s37", f"s_lshl_b32 s37, s{S_NT}, 8", "s_add_u32 s45, s45, s37")
    p("s_waitcnt lgkmcnt(0)")
    stamp(p, 1)
    p.srd(4, 34, WS_SZ)
    p.srd(8, 24, 1024 * 1024 * 2)
    p.srd(12, 26, 1024 * 1024 * 2)
    p.srd(48, 28, 3584 * 1024 * 2)
    p.srd(52, 30, 2048 * 1024 * 4)
    p.srd(56, 20, 2048 * 1024 * 2)
    p.srd(60, 22, 2048)
    nt = "nt" if OPT["w_nt"] else ""

    def dma_ops(st):
        slot = (st % 4) * K2_SLOT
        if st < 4:
            srd, vo, base, add = (8 if st < 2 else 12), V_DS, 44, (st & 1) * 256
        else:
            srd, vo, base, add = 48, V_DF, 45, (st - 4) * 128 * 2048
        ops = []
        for i in range(8):
            pre = []
            if i % 4 == 0:
                pre = [f"s_add_u32 s{S_B0}, s{base}, {add + (i//4)*32768}", f"s_add_u32 m0, s{S_M}, {slot + i*1024}"]
            ops.append((pre, f"buffer_load_dwordx4 v{vo+i%4}, s[{srd}:{srd+3}], s{S_B0} offen offset:{(i%4)*1024} {nt} lds", ("B", st)))
        return ops

    Areg = lambda s, j: ar(A_A + ((s % NAB) * 4 + j) * 4, 4)

    def a_ops(s):
        adv = [f"s_add_u32 s{S_A}, s{S_A}, 4096"] if s else []
        return [(adv if j == 0 else [], f"buffer_load_dwordx4 {Areg(s,j)}, v{V_AO+j}, s[4:7], s{S_A} offen", ("A", s)) for j in range(4)]

    def issue(ops):
        for pre, line, tag in ops:
            p(*pre)
            p.vm(line, tag)

    issue(dma_ops(0))
    for s in range(4):
        issue(a_ops(s))
    issue(dma_ops(1))
    for s in range(4, DA):
        issue(a_ops(s))

    p(f"v_lshrrev_b32 v{t}, 2, v0", f"v_and_b32 v{t+1}, 7, v{t}", f"v_lshlrev_b32 v{t}, 8, v{t}", f"v_and_b32 v{t+2}, 3, v0", f"v_lshl_add_u32 v{t}, v{t+2}, 3, v{t}")
    for b in range(8):
        p(f"v_xor_b32 v{t+2}, {b}, v{t+1}", f"v_lshl_add_u32 v{V_RF+b}, v{t+2}, 5, v{t}", f"v_add_u32 v{V_RF+8+b}, {2*K2_SLOT}, v{V_RF+b}")
    p(f"v_and_b32 v{t}, 15, v0", f"v_lshrrev_b32 v{t+1}, 4, v0", f"v_xor_b32 v{t+1}, v{t+1}, v{t}", f"v_lshlrev_b32 v{t}, 8, v{t}")
    for sl in range(4):
        p(f"v_xor_b32 v{t+2}, {4*sl}, v{t+1}", f"v_lshl_add_u32 v{V_RS+sl}, v{t+2}, 4, v{t}", f"v_add_u32 v{V_RS+4+sl}, {2*K2_SLOT}, v{V_RS+sl}")
    p(f"v_and_b32 v{t}, 15, v0", f"v_lshrrev_b32 v{t+1}, 4, v0", f"v_lshrrev_b32 v{t+2}, 2, v{t}", f"v_lshlrev_b32 v{t+2}, 4, v{t+2}",
      f"v_and_b32 v{t+3}, 3, v0", f"v_add_u32 v{t+2}, v{t+2}, v{t+3}", f"v_lshlrev_b32 v{t+2}, 11, v{t+2}", f"v_lshl_add_u32 v39, v{t+1}, 3, v{t+2}",
      "v_lshlrev_b32 v38, 1, v39", f"v_lshlrev_b32 v49, 3, v{t+1}",
      f"v_lshrrev_b32 v{t+2}, 1, v{t+1}", f"v_lshlrev_b32 v{t+2}, 8, v{t+2}", f"v_lshl_add_u32 v{t+2}, v{t}, 4, v{t+2}",
      f"v_and_b32 v{t+1}, 1, v{t+1}", f"v_lshl_add_u32 v48, v{t+1}, 3, v{t+2}")
    S_X, S_XN, S_D, S_OUT, S_XC, S_FL = 64, 65, 66, 67, 68, 69
    p(f"s_lshl_b32 s37, s{S_WT}, 4", f"s_add_u32 s37, s37, s{S_KQ}", "s_lshl_b32 s37, s37, 13", f"s_lshl_b32 s{S_D}, s{S_NT}, 8",
      f"s_add_u32 s{S_X}, s37, s{S_D}", f"s_lshl_b32 s{S_OUT}, s{S_X}, 1",
      f"s_lshl_b32 s{S_XN}, s{S_WT}, 17", f"s_lshl_b32 s37, s{S_NT}, 14", f"s_add_u32 s{S_XN}, s{S_XN}, s37", f"s_lshl_b32 s37, s{S_KQ}, 10",
      f"s_add_u32 s{S_XN}, s{S_XN}, s37",
      f"s_lshl_b32 s37, s{S_WT}, 3", f"s_add_u32 s37, s37, s{S_NT}",
      f"s_mul_i32 s{S_XC}, s37, {4*3*8192}", f"s_add_u32 s{S_XC}, s{S_XC}, {WS_XC}",
      f"s_lshl_b32 s{S_FL}, s37, 8", f"s_add_u32 s{S_FL}, s{S_FL}, {WS_FL}")
    stamp(p, 2)

    Breg = lambda g, h=None: ar(A_B + (g % NBB) * 4, 4) if h is None else ar(A_B + (g % NBB) * 4 + 2 * h, 2)
    ACC = lambda b, j: V_ACC + (j * 8 + b) * 4

    def reads(s, n, g):
        st, sl = divmod(s, 4)
        slot = st % 4
        so = (slot & 1) * K2_SLOT
        if st < 4:
            return [f"ds_read_b128 {Breg(g)}, v{V_RS + 4*(slot>>1) + sl} offset:{so + n*4096}"]
        return [f"ds_read_b64_tr_b16 {Breg(g,h)}, v{V_RF + 8*(slot>>1) + n} offset:{so + sl*8192 + h*4096}" for h in range(2)]

    def mfma(s, n, j, g):
        d = vr(ACC(n, j), 4)
        return f"v_mfma_f32_16x16x32_bf16 {d}, {Breg(g)}, {Areg(s,j)}, {d if s else 0}"

    base_ops = []
    for b in range(8):
        base_ops.append(([], f"buffer_load_dwordx2 v[{V_X+2*b}:{V_X+2*b+1}], v39, s[56:59], s{S_X} offen offset:{b*32}", "base"))
        pre = [f"s_add_u32 s{S_XN}, s{S_XN}, 4096"] if b and b % 2 == 0 else []
        base_ops.append((pre, f"buffer_load_dwordx2 v[{V_XN+2*b}:{V_XN+2*b+1}], v48, s[4:7], s{S_XN} offen offset:{(b&1)*512}", "base"))
        base_ops.append(([], f"buffer_load_dwordx2 v[{V_D+2*b}:{V_D+2*b+1}], v49, s[60:63], s{S_D} offen offset:{b*32}", "base"))

    def vmops(s):
        st, sl = divmod(s, 4)
        d = dma_ops(st + 2)[2 * sl:2 * sl + 2] if st + 2 < 11 else []
        a = a_ops(s + DA) if s + DA < 44 else []
        if s >= 40:
            return base_ops[(s - 40) * 6:(s - 39) * 6]
        return d[:1] + a[:2] + d[1:] + a[2:]

    gemm(p, 44, 8, 4, reads, mfma, vmops, PF)
    stamp(p, 3)

    for j in range(1, 4):
        p(f"s_xor_b32 s37, s{S_KQ}, {j}", "s_mul_i32 s37, s37, 3", f"s_add_u32 s37, s37, {j-1}", "s_lshl_b32 s37, s37, 13",
          f"s_add_u32 s70, s37, s{S_XC}", "s_add_u32 s71, s70, 4096")
        for b in range(8):
            a = ACC(b, j)
            p.vm(f"buffer_store_dwordx4 v[{a}:{a+3}], v1, s[4:7], s{70 + b//4} offen offset:{(b%4)*1024} sc1")
    p("s_mov_b32 s72, 0xffff0000")
    p.wait(v=lambda x: x == "base")
    for b in range(8):
        for k, src in enumerate((V_X, V_XN, V_D)):
            for h in range(2):
                p(f"v_lshlrev_b32 v{112+4*k+2*h}, 16, v{src+2*b+h}", f"v_and_b32 v{112+4*k+2*h+1}, s72, v{src+2*b+h}")
        a = ACC(b, 0)
        p("v_pk_mul_f32 v[116:117], v[116:117], v[120:121]", "v_pk_mul_f32 v[118:119], v[118:119], v[122:123]",
          f"v_pk_add_f32 v[{a}:{a+1}], v[{a}:{a+1}], v[112:113]", f"v_pk_add_f32 v[{a+2}:{a+3}], v[{a+2}:{a+3}], v[114:115]",
          "v_cvt_pk_bf16_f32 v120, v116, v117", "v_cvt_pk_bf16_f32 v121, v118, v119",
          "v_lshlrev_b32 v116, 16, v120", "v_and_b32 v117, s72, v120", "v_lshlrev_b32 v118, 16, v121", "v_and_b32 v119, s72, v121",
          f"v_pk_add_f32 v[{a}:{a+1}], v[{a}:{a+1}], v[116:117]", f"v_pk_add_f32 v[{a+2}:{a+3}], v[{a+2}:{a+3}], v[118:119]")
    p(f"s_lshl_b32 s37, s{S_KQ}, 2", f"v_mov_b32 v{t}, s37", f"v_mov_b32 v{t+1}, {OOB}", "v_cmp_eq_u32 vcc, 0, v0", f"v_cndmask_b32 v{t}, v{t+1}, v{t}, vcc",
      f"v_mov_b32 v{t+1}, 1", f"v_mov_b32 v{t+2}, 0")
    p.wait(v=ALL)
    stamp(p, 4)
    p(f"buffer_store_dword v{t+1}, v{t}, s[4:7], s{S_FL} offen sc1")
    p("s_mov_b32 s37, 0x20000", "K2_POLL:",
      f"buffer_load_dwordx4 v[{t+4}:{t+7}], v{t+2}, s[4:7], s{S_FL} offen sc1", "s_waitcnt vmcnt(0)",
      f"v_min3_u32 v{t+4}, v{t+4}, v{t+5}, v{t+6}", f"v_min_u32 v{t+4}, v{t+4}, v{t+7}", f"v_cmp_eq_u32 vcc, 0, v{t+4}",
      "s_sub_u32 s37, s37, 1", "s_cbranch_scc1 K2_GOT", "s_nop 2", "s_cbranch_vccnz K2_POLL", "K2_GOT:")
    stamp(p, 5)
    p(f"s_mul_i32 s37, s{S_KQ}, {3*8192}", f"s_add_u32 s70, s37, s{S_XC}")
    for i in range(1, 6):
        p(f"s_add_u32 s{70+i}, s70, {i*4096}")
    for b in range(8):
        for j in range(1, 4):
            a = ACC(b, j)
            p.vm(f"buffer_load_dwordx4 v[{a}:{a+3}], v1, s[4:7], s{70 + (j-1)*2 + b//4} offen offset:{(b%4)*1024} sc1", b)
    for b in range(8):
        p.wait(v=lambda x: x == b)
        a = ACC(b, 0)
        for h in range(2):
            p(f"v_pk_add_f32 v[{a+2*h}:{a+2*h+1}], v[{a+2*h}:{a+2*h+1}], v[{ACC(b,1)+2*h}:{ACC(b,1)+2*h+1}]",
              f"v_pk_add_f32 v[{ACC(b,2)+2*h}:{ACC(b,2)+2*h+1}], v[{ACC(b,2)+2*h}:{ACC(b,2)+2*h+1}], v[{ACC(b,3)+2*h}:{ACC(b,3)+2*h+1}]")
        for h in range(2):
            p(f"v_pk_add_f32 v[{a+2*h}:{a+2*h+1}], v[{a+2*h}:{a+2*h+1}], v[{ACC(b,2)+2*h}:{ACC(b,2)+2*h+1}]")
        p.vm(f"buffer_store_dwordx4 v[{a}:{a+3}], v38, s[52:55], s{S_OUT} offen offset:{b*64} {OPT['out_st']}", "o")
    stamp(p, 6)
    stamp_store(p, 2, 4, S_W, 4, V_T)
    p("K2_END:", "s_endpgm")
    return p.L


def descriptor(name, vgpr, accum):
    return f""".amdhsa_kernel {name}
  .amdhsa_next_free_vgpr {vgpr}
  .amdhsa_next_free_sgpr 102
  .amdhsa_accum_offset {accum}
  .amdhsa_group_segment_fixed_size 0
  .amdhsa_kernarg_size 128
  .amdhsa_user_sgpr_count 2
  .amdhsa_user_sgpr_kernarg_segment_ptr 1
  .amdhsa_system_sgpr_workgroup_id_x 1
  .amdhsa_float_denorm_mode_32 3
.end_amdhsa_kernel
"""


def build():
    ref = open("cdna_kernels/" + NAME + ".s.ref").read().split("\n")
    head = [l for l in ref if l.startswith("; Kernarg") or l.startswith(";   offset")]
    kernels = [("ln_kernel", k0, 512, 16384, 64, 64), ("inproj_kernel", k1, 256, K1_LDS, 512, 256), (NAME + "_kernel", k2, 256, K2_LDS, 512, 256)]
    out = list(head)
    for n, f, blk, lds, vg, acc in kernels:
        out.append(f"; @launch kernel={n} grid=(256,1,1) block=({blk},1,1) lds={lds}")
    out += ['.amdgcn_target "amdgcn-amd-amdhsa--gfx950"', ".text"]
    for n, f, blk, lds, vg, acc in kernels:
        body, added = fix_hazards(f())
        print(f"{n}: {len(body)} lines, {added} pads", file=sys.stderr)
        out += [f".globl {n}", ".p2align 8", f".type {n},@function", f"{n}:"]
        out += [l if l.endswith(":") else "    " + l for l in body]
    out += ['.section .rodata,"a"']
    for n, f, blk, lds, vg, acc in kernels:
        out += [".p2align 6", descriptor(n, vg, acc)]
    return "\n".join(out) + "\n"


if __name__ == "__main__":
    dst = sys.argv[1]
    for a in sys.argv[2:]:
        k, v = a.split("=", 1)
        assert k in OPT, k
        OPT[k] = int(v) if v.lstrip("-").isdigit() else v
    open(dst, "w").write(build())
```

```python
import sys
from asmlib import *

NAME = "parallel_sum__ssm_conv_s5__swiglu_ffn__prompt"
WS_XN = 0
WS_A2 = 4 << 20
WS_MB = 28 << 20
WS_FL = (28 << 20) + 65536
WS_ST = 29 << 20
WS_XC = 32 << 20
WS_SZ = 64 << 20
OOB = 0x10000000
A2_WT = 176 * 4096

KA = dict(x=0, lre=8, lim=16, bre=24, bim=32, cre=40, cim=48, ldt=56, dsk=64, wg=80, wu=88, wd=96, out=104, dbg=112, ws=120)

OPT = dict(stamps=0, k1_da=3, k2_da=7, pf=3, w_nt=0, x_nt=1, a2_st="", xn_st="", out_st="", order="012")


def fbits(x):
    import struct
    return hex(struct.unpack("<I", struct.pack("<f", x))[0])


class P:
    def __init__(self):
        self.L, self.vq, self.lq = [], [], []

    def __call__(self, *lines):
        for l in lines:
            self.L.extend(x.strip() for x in l.strip().split("\n") if x.strip())

    def vm(self, line, tag=None):
        self.L.append(line)
        self.vq.append(tag)
        assert len(self.vq) <= 63, "vmcnt overflow"

    def ds(self, line, tag=None):
        self.L.append(line)
        self.lq.append(tag)

    @staticmethod
    def _cnt(q, pred):
        idx = max([i for i, t in enumerate(q) if pred(t)], default=-1)
        if idx < 0:
            return None
        n = len(q) - 1 - idx
        del q[: idx + 1]
        return n

    def wait(self, v=None, l=None):
        parts = []
        if v:
            n = self._cnt(self.vq, v)
            if n is not None:
                parts.append(f"vmcnt({n})")
        if l:
            n = self._cnt(self.lq, l)
            if n is not None:
                assert n <= 15
                parts.append(f"lgkmcnt({n})")
        if parts:
            self.L.append("s_waitcnt " + " ".join(parts))

    def srd(self, d, src, size):
        self(f"s_mov_b32 s{d}, s{src}", f"s_mov_b32 s{d+1}, s{src+1}", f"s_mov_b32 s{d+2}, {hex(size)}", f"s_mov_b32 s{d+3}, 0x20000")


ALL = lambda t: True


def stamp(p, i):
    if OPT["stamps"]:
        p(f"s_memrealtime s[{84+2*i}:{85+2*i}]")


def stamp_store(p, kidx, srd, swave, nw, tmp):
    if not OPT["stamps"]:
        return
    p("s_waitcnt vmcnt(0)")
    stamp(p, 7)
    p("s_waitcnt lgkmcnt(0)")
    for i in range(8):
        p(f"v_mov_b32 v{tmp+i}, s{84+2*i}")
    p(f"s_mul_i32 s3, s2, {nw}", f"s_add_u32 s3, s3, s{swave}", "s_lshl_b32 s3, s3, 5", f"s_add_u32 s3, s3, {WS_ST + kidx*(1<<17)}",
      f"v_mov_b32 v{tmp+8}, 0")
    p(f"buffer_store_dwordx4 v[{tmp}:{tmp+3}], v{tmp+8}, s[{srd}:{srd+3}], s3 offen",
      f"buffer_store_dwordx4 v[{tmp+4}:{tmp+7}], v{tmp+8}, s[{srd}:{srd+3}], s3 offen offset:16")


def wave_sum(p, v, t):
    for m in ("quad_perm:[1,0,3,2]", "quad_perm:[2,3,0,1]", "row_half_mirror", "row_mirror"):
        p(f"v_add_f32_dpp v{v}, v{v}, v{v} {m} row_mask:0xf bank_mask:0xf")
    for sw in ("v_permlane16_swap_b32", "v_permlane32_swap_b32"):
        p(f"v_mov_b32 v{t}, v{v}", f"{sw} v{v}, v{t}", f"v_add_f32 v{v}, v{v}, v{t}")


def rbf(p, d, s):
    p(f"v_cvt_pk_bf16_f32 v{d}, v{s}, v{s}", f"v_lshlrev_b32 v{d}, 16, v{d}")


def k0():
    p = P()
    stamp(p, 0)
    p("s_cmp_ge_u32 s2, 256", "s_cbranch_scc1 K0_END")
    p(f"s_load_dwordx2 s[20:21], s[0:1], {KA['x']}", f"s_load_dwordx2 s[22:23], s[0:1], {KA['ws']}")
    p("v_lshrrev_b32 v1, 6, v0", "v_readfirstlane_b32 s16, v1", "v_and_b32 v2, 63, v0", "v_lshlrev_b32 v3, 4, v2")
    p("s_lshr_b32 s17, s2, 3", "s_bfe_u32 s18, s2, 0x20001", "s_and_b32 s19, s2, 1")
    p("s_lshl_b32 s24, s19, 3", "s_add_u32 s24, s24, s16")
    p("s_lshr_b32 s25, s24, 2", "s_lshl_b32 s25, s25, 4", "s_and_b32 s26, s24, 3", "s_add_u32 s25, s25, s26",
      "s_lshl_b32 s26, s18, 2", "s_add_u32 s25, s25, s26", "s_lshl_b32 s26, s17, 6", "s_add_u32 s25, s25, s26",
      "s_lshl_b32 s25, s25, 11")
    p("s_waitcnt lgkmcnt(0)")
    p.srd(8, 20, 4 << 20)
    p.srd(4, 22, WS_SZ)
    nt = "nt" if OPT["x_nt"] else ""
    p(f"buffer_load_dwordx4 v[8:11], v3, s[8:11], s25 offen {nt}", f"buffer_load_dwordx4 v[12:15], v3, s[8:11], s25 offen offset:1024 {nt}")
    p("s_cmp_gt_u32 s16, 1", "s_cbranch_scc1 K0_NOINIT",
      "s_sub_u32 s27, s16, 1", "v_mov_b32 v4, s27", "s_lshl_b32 s27, s16, 16", "s_lshl_b32 s28, s2, 8", "s_add_u32 s27, s27, s28",
      f"s_add_u32 s27, s27, {WS_MB}", "v_lshlrev_b32 v5, 2, v2",
      "buffer_store_dword v4, v5, s[4:7], s27 offen", "K0_NOINIT:")
    p("v_and_b32 v4, 7, v2", "v_xor_b32 v4, s16, v4", "v_lshlrev_b32 v4, 4, v4", "v_lshl_add_u32 v4, v2, 7, v4")
    p("v_lshrrev_b32 v5, 3, v0", "v_xor_b32 v6, v5, v0", "v_and_b32 v6, 7, v6", "v_lshlrev_b32 v6, 4, v6", "v_lshl_add_u32 v6, v5, 7, v6")
    p("v_lshrrev_b32 v7, 2, v5", "v_lshlrev_b32 v7, 12, v7", "v_and_b32 v5, 3, v5", "v_lshl_add_u32 v7, v5, 8, v7",
      "v_and_b32 v5, 7, v0", "v_lshl_add_u32 v7, v5, 4, v7")
    p("s_lshl_b32 s27, s17, 17", "s_lshl_b32 s28, s18, 10", "s_add_u32 s27, s27, s28", "s_lshl_b32 s28, s19, 7", "s_add_u32 s27, s27, s28",
      "s_add_u32 s28, s27, 0x10000", "s_mov_b32 s29, 0xffff0000")
    p("s_waitcnt vmcnt(0)")
    stamp(p, 1)
    F = 16
    for i in range(8):
        p(f"v_lshlrev_b32 v{F+2*i}, 16, v{8+i}", f"v_and_b32 v{F+2*i+1}, s29, v{8+i}")
    T = 32
    for i in range(4):
        p(f"v_pk_add_f32 v[{T+2*i}:{T+2*i+1}], v[{F+4*i}:{F+4*i+1}], v[{F+4*i+2}:{F+4*i+3}]")
    p(f"v_pk_add_f32 v[{T}:{T+1}], v[{T}:{T+1}], v[{T+2}:{T+3}]", f"v_pk_add_f32 v[{T+4}:{T+5}], v[{T+4}:{T+5}], v[{T+6}:{T+7}]",
      f"v_pk_add_f32 v[{T}:{T+1}], v[{T}:{T+1}], v[{T+4}:{T+5}]", f"v_add_f32 v48, v{T}, v{T+1}")
    wave_sum(p, 48, 49)
    p(f"v_mul_f32 v48, {fbits(1/1024)}, v48")
    for i in range(8):
        p(f"v_pk_add_f32 v[{T+2*i}:{T+2*i+1}], v[{F+2*i}:{F+2*i+1}], v[48:49] op_sel_hi:[1,0] neg_lo:[0,1] neg_hi:[0,1]")
    p(f"v_pk_mul_f32 v[50:51], v[{T}:{T+1}], v[{T}:{T+1}]", f"v_pk_mul_f32 v[52:53], v[{T+2}:{T+3}], v[{T+2}:{T+3}]")
    for i in range(2, 8):
        d = 50 + 2 * (i & 1)
        p(f"v_pk_fma_f32 v[{d}:{d+1}], v[{T+2*i}:{T+2*i+1}], v[{T+2*i}:{T+2*i+1}], v[{d}:{d+1}]")
    p("v_pk_add_f32 v[50:51], v[50:51], v[52:53]", "v_add_f32 v50, v50, v51")
    wave_sum(p, 50, 51)
    p(f"v_mul_f32 v50, {fbits(1/1024)}, v50")
    rbf(p, 48, 48)
    rbf(p, 50, 50)
    p(f"v_add_f32 v50, {fbits(1e-5)}, v50")
    rbf(p, 50, 50)
    p("v_sqrt_f32 v50, v50")
    rbf(p, 50, 50)
    p("v_rcp_f32 v50, v50")
    for i in range(8):
        p(f"v_pk_add_f32 v[{T+2*i}:{T+2*i+1}], v[{F+2*i}:{F+2*i+1}], v[48:49] op_sel_hi:[1,0] neg_lo:[0,1] neg_hi:[0,1]")
    for i in range(8):
        p(f"v_cvt_pk_bf16_f32 v{8+i}, v{T+2*i}, v{T+2*i+1}")
    for i in range(8):
        p(f"v_lshlrev_b32 v{F+2*i}, 16, v{8+i}", f"v_and_b32 v{F+2*i+1}, s29, v{8+i}")
    for i in range(8):
        p(f"v_pk_mul_f32 v[{F+2*i}:{F+2*i+1}], v[{F+2*i}:{F+2*i+1}], v[50:51] op_sel_hi:[1,0]")
    for i in range(8):
        p(f"v_cvt_pk_bf16_f32 v{8+i}, v{F+2*i}, v{F+2*i+1}")
    p("ds_write_b128 v4, v[8:11]", "ds_write_b128 v4, v[12:15] offset:8192", "s_waitcnt lgkmcnt(0)", "s_barrier",
      "ds_read_b128 v[16:19], v6", "ds_read_b128 v[20:23], v6 offset:8192")
    st = OPT["xn_st"]
    p("s_waitcnt lgkmcnt(1)", f"buffer_store_dwordx4 v[16:19], v7, s[4:7], s27 offen {st}",
      "s_waitcnt lgkmcnt(0)", f"buffer_store_dwordx4 v[20:23], v7, s[4:7], s28 offen {st}")
    stamp(p, 2)
    stamp_store(p, 0, 4, 16, 8, 32)
    p("K0_END:", "s_endpgm")
    return p.L


def gemm(p, nsteps, nfrag, stage_len, reads, mfma, vmops, PF):
    tot = nsteps * nfrag

    def first_of_stage(g):
        s, n = divmod(g, nfrag)
        return n == 0 and s % stage_len == 0

    def do_reads(g):
        s, n = divmod(g, nfrag)
        return [(l, g) for l in reads(s, n, g)]

    p.wait(v=lambda t: t == ("B", 0))
    p("s_barrier")
    for g in range(PF):
        for l, t in do_reads(g):
            p.ds(l, t)
    for s in range(nsteps):
        ops = vmops(s)
        barfrag = nfrag - PF if (s + 1) % stage_len == 0 and s + 1 < nsteps else None
        slots = [n for n in range(nfrag) if n != barfrag]
        place = {}
        for i, o in enumerate(ops):
            place.setdefault(slots[i * len(slots) // len(ops)], []).append(o)
        for n in range(nfrag):
            g = s * nfrag + n
            nxt = g + PF
            bar = nxt < tot and first_of_stage(nxt)
            stg = (nxt // nfrag) // stage_len
            p.wait(v=lambda t: (n == 0 and t == ("A", s)) or (bar and t == ("B", stg)), l=lambda t: t == g)
            gaps = [[], [], [], []]
            rd = do_reads(nxt) if nxt < tot else []
            o = 0
            if bar:
                gaps[0].append(("x", "s_barrier", None))
                o = 1
            for i, (l, t) in enumerate(rd):
                gaps[o + i].append(("ds", l, t))
            for i, (pre, line, tag) in enumerate(place.get(n, [])):
                assert i < 2
                for x in pre:
                    gaps[1 + i].append(("x", x, None))
                gaps[2 + i].append(("vm", line, tag))
            for j in range(4):
                p(mfma(s, n, j, g))
                for kind, l, t in gaps[j]:
                    if kind == "x":
                        p(l)
                    elif kind == "ds":
                        p.ds(l, t)
                    else:
                        p.vm(l, t)


def cmul(p, d, a, b, t):
    p(f"v_mul_f32 v{d}, v{a}, v{b}", f"v_mul_f32 v{d+1}, v{a}, v{b+1}",
      f"v_fma_f32 v{d}, -v{a+1}, v{b+1}, v{d}", f"v_fmac_f32 v{d+1}, v{a+1}, v{b}")


def cfma2(p, items):
    for d, l, z, c in items:
        p(f"v_fma_f32 v{d[0]}, v{l[0]}, v{z[0]}, v{c[0]}" if d[0] != c[0] else f"v_fmac_f32 v{d[0]}, v{l[0]}, v{z[0]}")
        p(f"v_fma_f32 v{d[1]}, v{l[0]}, v{z[1]}, v{c[1]}" if d[1] != c[1] else f"v_fmac_f32 v{d[1]}, v{l[0]}, v{z[1]}")
    for d, l, z, c in items:
        p(f"v_fma_f32 v{d[0]}, -v{l[1]}, v{z[1]}, v{d[0]}", f"v_fmac_f32 v{d[1]}, v{l[1]}, v{z[0]}")


def pr(x):
    return (x, x + 1)


K1_SLOT = 36864
K1_Z = 4 * K1_SLOT
K1_LDS = K1_Z + 2048


def k1():
    p = P()
    DA, PF = OPT["k1_da"], OPT["pf"]
    NAB, NBB = DA + 1, PF + 1
    assert NAB <= 8 and NBB <= 4
    V_M1, V_C, V_T, V_S, V_G = 17, 18, 62, 80, 144
    A_U, A_A, A_B = 0, 112, 240
    CN = dict(l1=0, l16=1, l32=2, l64=3, l256=4, l512=5, l1024=6, m2=7, pg=8, pw=9, cf=10)
    C = lambda name, cb: V_C + (CN[name] * 2 + cb) * 2
    S_W, S_RB, S_CT, S_WT = 16, 17, 18, 19
    S_A, S_WO, S_BO, S_MF, S_MS = 40, 41, 42, 43, 44

    stamp(p, 0)
    p("s_cmp_ge_u32 s2, 256", "s_cbranch_scc1 K1_END")
    p(f"s_load_dwordx4 s[20:23], s[0:1], {KA['lre']}", f"s_load_dwordx4 s[24:27], s[0:1], {KA['bre']}",
      f"s_load_dwordx2 s[32:33], s[0:1], {KA['ldt']}", f"s_load_dwordx4 s[28:31], s[0:1], {KA['wg']}",
      f"s_load_dwordx2 s[34:35], s[0:1], {KA['ws']}")
    p("v_lshrrev_b32 v1, 6, v0", f"v_readfirstlane_b32 s{S_W}, v1", "v_and_b32 v0, 63, v0", "v_lshlrev_b32 v1, 4, v0")
    p("s_and_b32 s36, s2, 1", "s_lshl_b32 s36, s36, 2", "s_bfe_u32 s37, s2, 0x20003", f"s_add_u32 s{S_RB}, s36, s37",
      "s_bfe_u32 s36, s2, 0x20001", "s_lshl_b32 s36, s36, 3", "s_lshr_b32 s37, s2, 5", f"s_add_u32 s{S_CT}, s36, s37",
      f"s_lshl_b32 s36, s{S_RB}, 2", f"s_add_u32 s{S_WT}, s36, s{S_W}")
    t = V_T
    p(f"s_and_b32 s36, s{S_CT}, 1", "s_lshl_b32 s36, s36, 1")
    for i in range(7):
        p(f"v_add_u32 v{t}, {64*i}, v0", f"v_mul_u32_u24 v{t+1}, 4682, v{t}", f"v_lshrrev_b32 v{t+1}, 16, v{t+1}",
          f"v_mul_u32_u24 v{t+2}, 14, v{t+1}", f"v_sub_u32 v{t+2}, v{t}, v{t+2}", f"v_add_u32 v{t+2}, s36, v{t+2}",
          f"v_subrev_u32 v{t+3}, 14, v{t+2}", f"v_min_u32 v{t+2}, v{t+2}, v{t+3}",
          f"v_bfe_u32 v{t+3}, v{t+1}, 2, 2", f"v_lshlrev_b32 v{t+3}, 3, v{t+3}", f"v_and_b32 v{t+4}, 3, v{t+1}", f"v_add_u32 v{t+3}, v{t+3}, v{t+4}",
          f"v_lshrrev_b32 v{t+4}, 4, v{t+1}", f"v_lshl_add_u32 v{t+3}, v{t+4}, 2, v{t+3}",
          f"v_mul_u32_u24 v{t+3}, 7168, v{t+3}", f"v_lshl_add_u32 v{2+i}, v{t+2}, 4, v{t+3}")
        if i % 4:
            p(f"v_subrev_u32 v{2+i}, {(i%4)*1024}, v{2+i}")
    for i in range(2):
        p(f"v_lshrrev_b32 v{t}, 3, v0", f"v_add_u32 v{t}, {8*i}, v{t}", f"v_lshrrev_b32 v{t+1}, 1, v{t}", f"v_xor_b32 v{t+1}, v{t+1}, v0",
          f"v_and_b32 v{t+1}, 7, v{t+1}", f"v_lshlrev_b32 v{t+1}, 4, v{t+1}", f"v_lshl_add_u32 v{9+i}, v{t}, 11, v{t+1}")
        if i:
            p(f"v_subrev_u32 v{9+i}, 1024, v{9+i}")
    p(f"s_and_b32 s36, s{S_W}, 1", f"s_mul_i32 s{S_WO}, s36, {32*7168}", f"s_mul_i32 s37, s{S_CT}, 224", f"s_add_u32 s{S_WO}, s{S_WO}, s37",
      f"s_lshl_b32 s37, s{S_CT}, 1", "s_add_u32 s37, s37, s36", f"s_lshl_b32 s{S_BO}, s37, 15",
      f"s_mul_i32 s{S_MF}, s{S_W}, 7168", f"s_lshl_b32 s{S_MS}, s{S_W}, 11", f"s_add_u32 s{S_MS}, s{S_MS}, 28672",
      f"s_lshl_b32 s{S_A}, s{S_WT}, 17")
    p(f"v_and_b32 v{t}, 15, v0", f"s_lshl_b32 s36, s{S_CT}, 5", f"v_add_u32 v{t}, s36, v{t}", f"v_lshlrev_b32 v{t}, 1, v{t}")
    p("s_waitcnt lgkmcnt(0)")
    stamp(p, 1)
    p.srd(4, 34, WS_SZ)
    p(f"s_cmp_ge_u32 s{S_W}, 2", "s_cselect_b32 s8, s30, s28", "s_cselect_b32 s9, s31, s29", "s_cselect_b32 s12, s26, s24", "s_cselect_b32 s13, s27, s25",
      f"s_mov_b32 s10, {1024*3584*2}", "s_mov_b32 s11, 0x20000", f"s_mov_b32 s14, {1024*1024*2}", "s_mov_b32 s15, 0x20000")
    RAW = V_T + 8
    for cb in range(2):
        for k, base in enumerate((20, 22, 32)):
            p.vm(f"global_load_ushort v{RAW+3*cb+k}, v{t}, s[{base}:{base+1}] offset:{32*cb}", "C")

    nt = "nt" if OPT["w_nt"] else ""

    def dma_ops(st):
        slot = (st % 4) * K1_SLOT
        f = lambda i: f"buffer_load_dwordx4 v{2+i}, s[8:11], s{S_WO} offen offset:{(i%4)*1024} {nt} lds"
        b = lambda i: f"buffer_load_dwordx4 v{9+i}, s[12:15], s{S_BO} offen offset:{i*1024} {nt} lds"
        tag = ("B", st)
        adv_w = [f"s_add_u32 s{S_WO}, s{S_WO}, {64*7168}"] if st else []
        adv_b = [f"s_add_u32 s{S_BO}, s{S_BO}, 128"] if st else []
        h0 = [(adv_w + [f"s_add_u32 m0, s{S_MF}, {slot}"], f(0), tag), ([], f(1), tag), ([], f(2), tag), ([], f(3), tag),
              (adv_b + [f"s_add_u32 m0, s{S_MS}, {slot}"], b(0), tag)]
        h1 = [([], b(1), tag), ([f"s_add_u32 m0, s{S_MF}, {slot+4096}"], f(4), tag), ([], f(5), tag), ([], f(6), tag)]
        return h0, h1

    Areg = lambda s, j: ar(A_A + ((s % NAB) * 4 + j) * 4, 4)

    def a_ops(s):
        adv = [f"s_add_u32 s{S_A}, s{S_A}, 4096"] if s else []
        return [(adv if j == 0 else [], f"buffer_load_dwordx4 {Areg(s,j)}, v1, s[4:7], s{S_A} offen offset:{j*1024}", ("A", s)) for j in range(4)]

    def issue(ops):
        for pre, line, tag in ops:
            p(*pre)
            p.vm(line, tag)

    h0, h1 = dma_ops(0)
    issue(h0 + h1)
    issue(a_ops(0))
    issue(a_ops(1))
    h0, h1 = dma_ops(1)
    issue(h0 + h1)
    for s in range(2, DA):
        issue(a_ops(s))

    p(f"v_lshrrev_b32 v{t}, 2, v0", f"v_mul_u32_u24 v{t}, 224, v{t}", f"v_and_b32 v{t+1}, 3, v0", f"v_lshl_add_u32 v11, v{t+1}, 3, v{t}",
      f"v_add_u32 v12, {2*K1_SLOT}, v11")
    p(f"v_and_b32 v{t}, 15, v0", f"v_lshrrev_b32 v{t+1}, 4, v0", f"v_lshrrev_b32 v{t+2}, 1, v{t}", f"v_xor_b32 v{t+1}, v{t+1}, v{t+2}",
      f"v_lshlrev_b32 v{t+1}, 4, v{t+1}", f"v_lshl_add_u32 v{t+1}, v{t}, 7, v{t+1}", f"v_add_u32 v13, 28672, v{t+1}", f"v_xor_b32 v14, 64, v13",
      f"v_add_u32 v15, {2*K1_SLOT}, v13", f"v_add_u32 v16, {2*K1_SLOT}, v14")
    for i in range(4):
        p(f"v_mov_b32 v{t+i}, 0")
    p(f"v_add_u32 v{t+4}, {K1_Z}, v1")
    p.ds(f"ds_write_b128 v{t+4}, v[{t}:{t+3}]", "z")

    p.wait(v=lambda x: x == "C", l=ALL)
    L2E = fbits(1.4426950408889634)
    p("v_and_b32 v%d, 16, v0" % t, f"v_cmp_ne_u32 s[46:47], 0, v{t}", f"v_and_b32 v{t}, 32, v0", f"v_cmp_ne_u32 s[48:49], 0, v{t}",
      f"s_bitcmp1_b32 s{S_W}, 0", "s_cselect_b64 s[50:51], -1, 0", f"s_bitcmp1_b32 s{S_W}, 1", "s_cselect_b64 s[52:53], -1, 0",
      f"v_cndmask_b32 v{V_M1}, 0, 1.0, s[46:47]")
    for cb in range(2):
        lr, li, ld = RAW + 3 * cb, RAW + 3 * cb + 1, RAW + 3 * cb + 2
        l1 = C("l1", cb)
        p(f"v_lshlrev_b32 v{lr}, 16, v{lr}", f"v_lshlrev_b32 v{li}, 16, v{li}", f"v_lshlrev_b32 v{ld}, 16, v{ld}",
          f"v_mul_f32 v{ld}, {L2E}, v{ld}", f"v_exp_f32 v{ld}, v{ld}")
        rbf(p, ld, ld)
        p(f"v_mul_f32 v{t}, v{ld}, v{lr}", f"v_mul_f32 v{t+1}, v{ld}, v{li}",
          f"v_mul_f32 v{t}, {L2E}, v{t}", f"v_exp_f32 v{t}, v{t}",
          f"v_mul_f32 v{t+1}, 0.15915494, v{t+1}", f"v_rndne_f32 v{t+2}, v{t+1}", f"v_sub_f32 v{t+1}, v{t+1}, v{t+2}",
          f"v_cos_f32 v{t+2}, v{t+1}", f"v_sin_f32 v{t+3}, v{t+1}",
          f"v_mul_f32 v{l1}, v{t}, v{t+2}", f"v_mul_f32 v{l1+1}, v{t}, v{t+3}")
        cf = C("cf", cb)
        p(f"v_add_f32 v{t}, -1.0, v{l1}", f"v_mul_f32 v{t+1}, v{lr}, v{lr}", f"v_fmac_f32 v{t+1}, v{li}, v{li}", f"v_rcp_f32 v{t+1}, v{t+1}",
          f"v_mul_f32 v{cf}, v{t}, v{lr}", f"v_fmac_f32 v{cf}, v{l1+1}, v{li}",
          f"v_mul_f32 v{cf+1}, v{l1+1}, v{lr}", f"v_fma_f32 v{cf+1}, -v{t}, v{li}, v{cf+1}",
          f"v_add_f32 v{t+1}, v{t+1}, v{t+1}", f"v_mul_f32 v{cf}, v{cf}, v{t+1}", f"v_mul_f32 v{cf+1}, v{cf+1}, v{t+1}")
        chain = [l1, t, t + 2, t, C("l16", cb), C("l32", cb), C("l64", cb), t + 4, C("l256", cb), C("l512", cb), C("l1024", cb)]
        for a, d in zip(chain, chain[1:]):
            cmul(p, d, a, a, None)
        for (lo, hi, mlo, mhi, dst) in ((C("l16", cb), C("l32", cb), 46, 48, "pg"), (C("l64", cb), t + 4, 50, 52, "pw")):
            p(f"v_cndmask_b32 v{t}, 1.0, v{lo}, s[{mlo}:{mlo+1}]", f"v_cndmask_b32 v{t+1}, 0, v{lo+1}, s[{mlo}:{mlo+1}]",
              f"v_cndmask_b32 v{t+2}, 1.0, v{hi}, s[{mhi}:{mhi+1}]", f"v_cndmask_b32 v{t+3}, 0, v{hi+1}, s[{mhi}:{mhi+1}]")
            cmul(p, C(dst, cb), t, t + 2, None)
            if dst == "pg":
                m2 = C("m2", cb)
                p(f"v_cndmask_b32 v{m2}, 0, v{t}, s[48:49]", f"v_cndmask_b32 v{m2+1}, 0, v{t+1}, s[48:49]")
    stamp(p, 2)

    Breg = lambda g, h=None: ar(A_B + (g % NBB) * 4, 4) if h is None else ar(A_B + (g % NBB) * 4 + 2 * h, 2)
    SS = lambda cb, part, j: V_S + ((cb * 2 + part) * 4 + j) * 4
    GG = lambda b, j: V_G + (b * 4 + j) * 4
    UU = lambda b, j: A_U + (b * 4 + j) * 4

    def reads(s, n, g):
        st, kh = divmod(s, 2)
        slot = st % 4
        so = (slot & 1) * K1_SLOT
        if n < 4:
            cb, part = n >> 1, n & 1
            return [f"ds_read_b128 {Breg(g)}, v{13 + 2*(slot>>1) + kh} offset:{so + (part*2+cb)*2048}"]
        b, m = (n - 4) >> 1, (n - 4) & 1
        return [f"ds_read_b64_tr_b16 {Breg(g,h)}, v{11 + (slot>>1)} offset:{so + (m*2+kh)*7168 + h*3584 + b*32}" for h in range(2)]

    def mfma(s, n, j, g):
        if n < 4:
            d = vr(SS(n >> 1, n & 1, j), 4)
            a, b = Areg(s, j), Breg(g)
        else:
            bb, m = (n - 4) >> 1, (n - 4) & 1
            d = ar(UU(bb, j), 4) if m else vr(GG(bb, j), 4)
            a, b = Breg(g), Areg(s, j)
        return f"v_mfma_f32_16x16x32_bf16 {d}, {a}, {b}, {d if s else 0}"

    def vmops(s):
        d = dma_ops(s // 2 + 2)[s % 2] if s // 2 + 2 < 16 else []
        a = a_ops(s + DA) if s + DA < 32 else []
        out = []
        while d or a:
            if d:
                out.append(d.pop(0))
            if a:
                out.append(a.pop(0))
        return out

    gemm(p, 32, 18, 2, reads, mfma, vmops, PF)
    stamp(p, 3)

    U = lambda cb, k: (SS(cb, 0, k >> 2) + (k & 3), SS(cb, 1, k >> 2) + (k & 3))
    E0, E1 = V_T, V_T + 4
    cur = [U(0, 0), U(1, 0)]
    for k in range(1, 16):
        dst = E0 if k % 2 else E1
        cfma2(p, [(pr(dst + 2 * cb), pr(C("l1", cb)), cur[cb], U(cb, k)) for cb in range(2)])
        cur = [pr(dst), pr(dst + 2)]
    Ea, Eb, Xc, Xd, Pp = E0, V_T + 4, V_T + 8, V_T + 12, 2
    for i in range(4):
        p(f"v_mov_b32 v{Eb+i}, v{Ea+i}")
    for i in range(4):
        p(f"v_permlane16_swap_b32 v{Ea+i}, v{Eb+i}")
    cfma2(p, [(pr(Xc + 2 * cb), pr(C("l16", cb)), pr(Ea + 2 * cb), pr(Eb + 2 * cb)) for cb in range(2)])
    for i in range(4):
        p(f"v_mov_b32 v{Xd+i}, v{Xc+i}")
    for i in range(4):
        p(f"v_permlane32_swap_b32 v{Xc+i}, v{Xd+i}")
    cfma2(p, [(pr(Xd + 2 * cb), pr(C("l32", cb)), pr(Xc + 2 * cb), pr(Xd + 2 * cb)) for cb in range(2)])
    p("v_and_b32 v10, 15, v0", "v_lshlrev_b32 v10, 4, v10", f"s_lshl_b32 s36, s{S_W}, 8", f"s_add_u32 s36, s36, {K1_Z}", "v_add_u32 v11, s36, v10")
    p.ds(f"ds_write_b128 v11, v[{Xd}:{Xd+3}] offset:768")
    for i in range(4):
        p(f"v_mul_f32 v{Pp+i}, v{V_M1}, v{Ea+i}")
    cfma2(p, [(pr(Pp + 2 * cb), pr(C("m2", cb)), pr(Xc + 2 * cb), pr(Pp + 2 * cb)) for cb in range(2)])
    p.wait(l=ALL)
    p("s_barrier")
    Z0, Z1, Q = V_T, V_T + 4, 6
    p.ds(f"ds_read_b128 v[{Z0}:{Z0+3}], v11", 0)
    p.ds(f"ds_read_b128 v[{Z1}:{Z1+3}], v11 offset:256", 0)
    p.ds(f"ds_read_b128 v[{Q}:{Q+3}], v11 offset:512", 1)
    p(f"s_lshl_b32 s36, s{S_CT}, 3", f"s_add_u32 s36, s36, s{S_RB}", "s_lshl_b32 s36, s36, 8", f"s_add_u32 s45, s36, {WS_MB - 2048}",
      f"s_cmp_eq_u32 s{S_W}, 3", f"s_cselect_b32 s36, 16, 0", f"v_mov_b32 v15, {OOB}", "v_cmp_gt_u32 vcc, s36, v0", "v_cndmask_b32 v12, v15, v10, vcc",
      "v_lshrrev_b32 v16, 4, v0", "v_lshl_add_u32 v13, v16, 9, v10", "v_lshlrev_b32 v16, 1, v16", f"s_sub_u32 s36, 8, s{S_RB}",
      "v_add_u32 v14, 256, v13", "v_cmp_le_u32 vcc, s36, v16", "v_cndmask_b32 v13, v15, v13, vcc",
      "v_add_u32 v16, 1, v16", "v_cmp_le_u32 vcc, s36, v16", "v_cndmask_b32 v14, v15, v14, vcc")
    p.wait(l=lambda x: x == 0)
    cfma2(p, [(pr(Z1 + 2 * cb), pr(C("l64", cb)), pr(Z0 + 2 * cb), pr(Z1 + 2 * cb)) for cb in range(2)])
    p.wait(l=ALL)
    cfma2(p, [(pr(Q + 2 * cb), pr(C("l64", cb)), pr(Z1 + 2 * cb), pr(Q + 2 * cb)) for cb in range(2)])
    cfma2(p, [(pr(Xd + 2 * cb), pr(C("l64", cb)), pr(Q + 2 * cb), pr(Xd + 2 * cb)) for cb in range(2)])
    for i in range(4):
        p(f"v_min_u32 v{Xd+i}, -2, v{Xd+i}")
    p.vm(f"buffer_store_dwordx4 v[{Xd}:{Xd+3}], v12, s[4:7], s45 offen offset:2048 sc1")
    stamp(p, 4)

    S_O, S_O1, S_RE = 54, 55, 56
    p(f"s_and_b32 s36, s{S_CT}, 7", f"s_lshr_b32 s37, s{S_CT}, 3", "s_mul_i32 s37, s37, 44",
      f"s_mul_i32 s38, s{S_WT}, {A2_WT}", f"s_add_u32 s38, s38, {WS_A2}",
      "s_add_u32 s39, s37, s36", "s_lshl_b32 s39, s39, 12", f"s_add_u32 s{S_RE}, s38, s39",
      "s_mul_i32 s39, s36, 7", "s_add_u32 s39, s39, 33", "s_lshr_b32 s39, s39, 1", "s_add_u32 s39, s39, s37", "s_lshl_b32 s39, s39, 12",
      f"s_add_u32 s{S_O}, s38, s39",
      f"s_movk_i32 s37, {3*4096}", "s_bitcmp1_b32 s36, 0", f"s_cselect_b32 s39, {(-4096 + 8) & 0xffffffff}, s37", f"s_add_u32 s{S_O1}, s{S_O}, s39",
      f"s_mov_b32 s58, {fbits(-1.4426950408889634)}", "s_mov_b32 s59, s58")
    st = OPT["a2_st"]
    TT, TU = V_T, V_T + 8

    def silu_group(blocks, outreg):
        g = [GG(b, j) for b, j in blocks]
        u = [UU(b, j) for b, j in blocks]
        n = len(blocks)
        for q in range(n):
            for h in range(2):
                p(f"v_pk_mul_f32 v[{TT+4*q+2*h}:{TT+4*q+2*h+1}], v[{g[q]+2*h}:{g[q]+2*h+1}], s[58:59]")
        for e in range(4 * n):
            p(f"v_exp_f32 v{TT+e}, v{TT+e}", f"v_accvgpr_read_b32 v{TU+e}, a{u[e>>2]+(e&3)}")
        for e in range(0, 4 * n, 2):
            p(f"v_pk_add_f32 v[{TT+e}:{TT+e+1}], v[{TT+e}:{TT+e+1}], 1.0 op_sel_hi:[1,0]")
        for e in range(0, 4 * n, 2):
            gg = g[e >> 2] + (e & 3)
            p(f"v_rcp_f32 v{TT+e}, v{TT+e}", f"v_rcp_f32 v{TT+e+1}, v{TT+e+1}",
              f"v_pk_mul_f32 v[{TU+e}:{TU+e+1}], v[{TU+e}:{TU+e+1}], v[{gg}:{gg+1}]")
        for e in range(0, 4 * n, 2):
            p(f"v_pk_mul_f32 v[{TU+e}:{TU+e+1}], v[{TU+e}:{TU+e+1}], v[{TT+e}:{TT+e+1}]")
        for e in range(0, 4 * n, 2):
            p(f"v_cvt_pk_bf16_f32 v{outreg+e//2}, v{TU+e}, v{TU+e+1}")

    M0, M1 = GG(0, 0), GG(0, 1)

    def poll_loads():
        p.vm(f"buffer_load_dwordx4 v[{M0}:{M0+3}], v13, s[4:7], s45 offen sc1", "poll")
        p.vm(f"buffer_load_dwordx4 v[{M1}:{M1+3}], v14, s[4:7], s45 offen sc1", "poll")

    for q in range(3):
        for j in range(4):
            o = GG(2 * q + 1, j)
            silu_group([(2 * q, j), (2 * q + 1, j)], o)
            p.vm(f"buffer_store_dwordx4 v[{o}:{o+3}], v1, s[4:7], s{S_O} offen offset:{j*1024} {st}", ("st", q))
        p(f"s_add_u32 s{S_O}, s{S_O}, 4096")
        if q == 1:
            poll_loads()
    for j in range(0, 4, 2):
        o = GG(6, j)
        silu_group([(6, j), (6, j + 1)], o)
        p.vm(f"buffer_store_dwordx2 v[{o}:{o+1}], v1, s[4:7], s{S_O1} offen offset:{j*1024} {st}")
        p.vm(f"buffer_store_dwordx2 v[{o+2}:{o+3}], v1, s[4:7], s{S_O1} offen offset:{(j+1)*1024} {st}")
    stamp(p, 5)

    p("s_mov_b32 s36, 0x20000")
    p.wait(v=lambda x: x == "poll")
    p("K1_POLL:",
      f"v_max3_u32 v{V_T}, v{M0}, v{M0+1}, v{M0+2}", f"v_max3_u32 v{V_T+1}, v{M0+3}, v{M1}, v{M1+1}",
      f"v_max3_u32 v{V_T}, v{V_T}, v{M1+2}, v{M1+3}", f"v_max_u32 v{V_T}, v{V_T}, v{V_T+1}",
      f"v_cmp_eq_u32 vcc, -1, v{V_T}", "s_sub_u32 s36, s36, 1", "s_cbranch_scc1 K1_GOT", "s_nop 2", "s_cbranch_vccz K1_GOT",
      f"buffer_load_dwordx4 v[{M0}:{M0+3}], v13, s[4:7], s45 offen sc1", f"buffer_load_dwordx4 v[{M1}:{M1+3}], v14, s[4:7], s45 offen sc1",
      "s_waitcnt vmcnt(0)", "s_branch K1_POLL", "K1_GOT:")
    stamp(p, 6)
    Ya, Yb = M1, V_T
    cfma2(p, [(pr(M1 + 2 * cb), pr(C("l256", cb)), pr(M0 + 2 * cb), pr(M1 + 2 * cb)) for cb in range(2)])
    for i in range(4):
        p(f"v_mov_b32 v{Yb+i}, v{Ya+i}")
    for i in range(4):
        p(f"v_permlane16_swap_b32 v{Ya+i}, v{Yb+i}")
    cfma2(p, [(pr(Yb + 2 * cb), pr(C("l512", cb)), pr(Ya + 2 * cb), pr(Yb + 2 * cb)) for cb in range(2)])
    for i in range(4):
        p(f"v_mov_b32 v{Ya+i}, v{Yb+i}")
    for i in range(4):
        p(f"v_permlane32_swap_b32 v{Ya+i}, v{Yb+i}")
    cfma2(p, [(pr(Yb + 2 * cb), pr(C("l1024", cb)), pr(Ya + 2 * cb), pr(Yb + 2 * cb)) for cb in range(2)])
    cfma2(p, [(pr(Q + 2 * cb), pr(C("pw", cb)), pr(Yb + 2 * cb), pr(Q + 2 * cb)) for cb in range(2)])
    cfma2(p, [(pr(Pp + 2 * cb), pr(C("pg", cb)), pr(Q + 2 * cb), pr(Pp + 2 * cb)) for cb in range(2)])

    cur = [pr(Pp), pr(Pp + 2)]
    for k in range(16):
        cfma2(p, [(U(cb, k), pr(C("l1", cb)), cur[cb], U(cb, k)) for cb in range(2)])
        cur = [U(0, k), U(1, k)]
    p("v_and_b32 v10, 15, v0", "v_mul_u32_u24 v10, 144, v10", "v_lshrrev_b32 v11, 4, v0", "v_lshl_add_u32 v10, v11, 5, v10",
      f"s_mul_i32 s36, s{S_W}, 9216", "v_add_u32 v10, s36, v10",
      "v_lshlrev_b32 v11, 3, v11", "v_bfe_u32 v12, v0, 2, 2", "v_add_u32 v11, v11, v12", "v_mul_u32_u24 v11, 144, v11",
      "v_and_b32 v12, 3, v0", "v_lshl_add_u32 v11, v12, 5, v11", "v_add_u32 v11, s36, v11")
    H = GG(2, 0)
    for cb in range(2):
        cf = C("cf", cb)
        for half in range(2):
            hr, hi = H + (cb * 2 + half) * 8, H + (cb * 2 + half) * 8 + 4
            for e in range(4):
                k = half * 8 + 2 * e
                zr, zi = U(cb, k)
                a, b = V_T + 4 * e, V_T + 4 * e + 2
                p(f"v_pk_mul_f32 v[{a}:{a+1}], v[{zr}:{zr+1}], v[{cf}:{cf+1}] op_sel:[0,0] op_sel_hi:[1,0]",
                  f"v_pk_mul_f32 v[{b}:{b+1}], v[{zi}:{zi+1}], v[{cf}:{cf+1}] op_sel:[0,0] op_sel_hi:[1,0] neg_lo:[1,0] neg_hi:[1,0]")
            for e in range(4):
                k = half * 8 + 2 * e
                zr, zi = U(cb, k)
                a, b = V_T + 4 * e, V_T + 4 * e + 2
                p(f"v_pk_fma_f32 v[{a}:{a+1}], v[{zi}:{zi+1}], v[{cf}:{cf+1}], v[{a}:{a+1}] op_sel:[0,1,0] op_sel_hi:[1,1,1] neg_lo:[1,0,0] neg_hi:[1,0,0]",
                  f"v_pk_fma_f32 v[{b}:{b+1}], v[{zr}:{zr+1}], v[{cf}:{cf+1}], v[{b}:{b+1}] op_sel:[0,1,0] op_sel_hi:[1,1,1] neg_lo:[1,0,0] neg_hi:[1,0,0]")
            for e in range(4):
                a, b = V_T + 4 * e, V_T + 4 * e + 2
                p(f"v_cvt_pk_bf16_f32 v{hr+e}, v{a}, v{a+1}", f"v_cvt_pk_bf16_f32 v{hi+e}, v{b}, v{b+1}")
            p.ds(f"ds_write_b128 v10, v[{hr}:{hr+3}] offset:{cb*16*144 + half*16}")
            p.ds(f"ds_write_b128 v10, v[{hi}:{hi+3}] offset:{(32+cb*16)*144 + half*16}")
    p.wait(l=ALL)
    for part in range(2):
        for j in range(4):
            for h in range(2):
                d = V_S + (part * 4 + j) * 4 + 2 * h
                p.ds(f"ds_read_b64_tr_b16 v[{d}:{d+1}], v11 offset:{(part*32 + 4*h)*144 + j*8}", (part, j))
    for part in range(2):
        if part:
            p(f"s_add_u32 s{S_RE}, s{S_RE}, {8*4096}")
        for j in range(4):
            d = V_S + (part * 4 + j) * 4
            p.wait(l=lambda x: x == (part, j))
            p.vm(f"buffer_store_dwordx4 v[{d}:{d+3}], v1, s[4:7], s{S_RE} offen offset:{j*1024} {st}")
    stamp_store(p, 1, 4, S_W, 4, V_T)
    p("K1_END:", "s_endpgm")
    return p.L


K2_SLOT = 32768
K2_LDS = 4 * K2_SLOT


def k2():
    p = P()
    DA, PF = OPT["k2_da"], OPT["pf"]
    NAB, NBB = DA + 1, PF + 1
    V_ACC, A_A, A_B = 128, 0, 192
    V_AO, V_DF, V_DS, V_RF, V_RS, V_T = 2, 6, 10, 14, 30, 40
    V_X, V_XN, V_D = 64, 80, 96
    S_W, S_MT, S_NT, S_WT, S_KQ = 16, 17, 18, 19, 36
    S_A, S_B0, S_B1, S_M = 40, 41, 42, 43
    stamp(p, 0)
    p("s_cmp_ge_u32 s2, 256", "s_cbranch_scc1 K2_END")
    p(f"s_load_dwordx2 s[20:21], s[0:1], {KA['x']}", f"s_load_dwordx4 s[24:27], s[0:1], {KA['cre']}",
      f"s_load_dwordx2 s[22:23], s[0:1], {KA['dsk']}", f"s_load_dwordx4 s[28:31], s[0:1], {KA['wd']}",
      f"s_load_dwordx2 s[34:35], s[0:1], {KA['ws']}")
    p("v_lshrrev_b32 v1, 6, v0", f"v_readfirstlane_b32 s{S_W}, v1", "v_and_b32 v0, 63, v0", "v_lshlrev_b32 v1, 4, v0")
    p("s_and_b32 s37, s2, 1", "s_lshl_b32 s37, s37, 2", "s_bfe_u32 s38, s2, 0x20003", f"s_add_u32 s{S_MT}, s37, s38",
      f"s_bfe_u32 s{S_KQ}, s2, 0x20001", f"s_lshr_b32 s{S_NT}, s2, 5",
      f"s_lshl_b32 s37, s{S_MT}, 2", f"s_add_u32 s{S_WT}, s37, s{S_W}")
    t = V_T
    for j in range(4):
        p(f"s_xor_b32 s37, s{S_KQ}, {j}", "s_lshl_b32 s37, s37, 10", f"v_add_u32 v{V_AO+j}, s37, v1")
    p(f"v_lshrrev_b32 v{t}, 4, v0", f"v_and_b32 v{t+1}, 15, v0")
    for i in range(4):
        p(f"v_add_u32 v{t+2}, {4*i}, v{t}", f"v_lshlrev_b32 v{t+3}, 11, v{t+2}")
        if i:
            p(f"v_subrev_u32 v{t+3}, {i*1024}, v{t+3}")
        p(f"v_xor_b32 v{t+4}, v{t+2}, v{t+1}", f"v_lshl_add_u32 v{V_DS+i}, v{t+4}, 4, v{t+3}",
          f"v_and_b32 v{t+2}, 7, v{t+2}", f"v_lshlrev_b32 v{t+2}, 1, v{t+2}", f"v_xor_b32 v{t+4}, v{t+2}, v{t+1}",
          f"v_lshl_add_u32 v{V_DF+i}, v{t+4}, 4, v{t+3}")
    p(f"s_mul_i32 s{S_A}, s{S_WT}, {A2_WT}", f"s_mul_i32 s37, s{S_KQ}, {44*4096}", f"s_add_u32 s{S_A}, s{S_A}, s37", f"s_add_u32 s{S_A}, s{S_A}, {WS_A2}",
      f"s_lshl_b32 s{S_M}, s{S_W}, 13",
      f"s_lshl_b32 s44, s{S_NT}, 18", f"s_lshl_b32 s37, s{S_KQ}, 9", "s_add_u32 s44, s44, s37", f"s_lshl_b32 s37, s{S_W}, 16", "s_add_u32 s44, s44, s37",
      f"s_mul_i32 s45, s{S_KQ}, {896*2048}", "s_add_u32 s45, s45, s37", f"s_lshl_b32 s37, s{S_NT}, 8", "s_add_u32 s45, s45, s37")
    p("s_waitcnt lgkmcnt(0)")
    stamp(p, 1)
    p.srd(4, 34, WS_SZ)
    p.srd(8, 24, 1024 * 1024 * 2)
    p.srd(12, 26, 1024 * 1024 * 2)
    p.srd(48, 28, 3584 * 1024 * 2)
    p.srd(52, 30, 2048 * 1024 * 4)
    p.srd(56, 20, 2048 * 1024 * 2)
    p.srd(60, 22, 2048)
    nt = "nt" if OPT["w_nt"] else ""

    def dma_ops(st):
        slot = (st % 4) * K2_SLOT
        if st < 4:
            srd, vo, base, add = (8 if st < 2 else 12), V_DS, 44, (st & 1) * 256
        else:
            srd, vo, base, add = 48, V_DF, 45, (st - 4) * 128 * 2048
        ops = []
        for i in range(8):
            pre = []
            if i % 4 == 0:
                pre = [f"s_add_u32 s{S_B0}, s{base}, {add + (i//4)*32768}", f"s_add_u32 m0, s{S_M}, {slot + i*1024}"]
            ops.append((pre, f"buffer_load_dwordx4 v{vo+i%4}, s[{srd}:{srd+3}], s{S_B0} offen offset:{(i%4)*1024} {nt} lds", ("B", st)))
        return ops

    Areg = lambda s, j: ar(A_A + ((s % NAB) * 4 + j) * 4, 4)

    def a_ops(s):
        adv = [f"s_add_u32 s{S_A}, s{S_A}, 4096"] if s else []
        return [(adv if j == 0 else [], f"buffer_load_dwordx4 {Areg(s,j)}, v{V_AO+j}, s[4:7], s{S_A} offen", ("A", s)) for j in range(4)]

    def issue(ops):
        for pre, line, tag in ops:
            p(*pre)
            p.vm(line, tag)

    issue(dma_ops(0))
    for s in range(4):
        issue(a_ops(s))
    issue(dma_ops(1))
    for s in range(4, DA):
        issue(a_ops(s))

    p(f"v_lshrrev_b32 v{t}, 2, v0", f"v_and_b32 v{t+1}, 7, v{t}", f"v_lshlrev_b32 v{t}, 8, v{t}", f"v_and_b32 v{t+2}, 3, v0", f"v_lshl_add_u32 v{t}, v{t+2}, 3, v{t}")
    for b in range(8):
        p(f"v_xor_b32 v{t+2}, {b}, v{t+1}", f"v_lshl_add_u32 v{V_RF+b}, v{t+2}, 5, v{t}", f"v_add_u32 v{V_RF+8+b}, {2*K2_SLOT}, v{V_RF+b}")
    p(f"v_and_b32 v{t}, 15, v0", f"v_lshrrev_b32 v{t+1}, 4, v0", f"v_xor_b32 v{t+1}, v{t+1}, v{t}", f"v_lshlrev_b32 v{t}, 8, v{t}")
    for sl in range(4):
        p(f"v_xor_b32 v{t+2}, {4*sl}, v{t+1}", f"v_lshl_add_u32 v{V_RS+sl}, v{t+2}, 4, v{t}", f"v_add_u32 v{V_RS+4+sl}, {2*K2_SLOT}, v{V_RS+sl}")
    p(f"v_and_b32 v{t}, 15, v0", f"v_lshrrev_b32 v{t+1}, 4, v0", f"v_lshrrev_b32 v{t+2}, 2, v{t}", f"v_lshlrev_b32 v{t+2}, 4, v{t+2}",
      f"v_and_b32 v{t+3}, 3, v0", f"v_add_u32 v{t+2}, v{t+2}, v{t+3}", f"v_lshlrev_b32 v{t+2}, 11, v{t+2}", f"v_lshl_add_u32 v39, v{t+1}, 3, v{t+2}",
      "v_lshlrev_b32 v38, 1, v39", f"v_lshlrev_b32 v49, 3, v{t+1}",
      f"v_lshrrev_b32 v{t+2}, 1, v{t+1}", f"v_lshlrev_b32 v{t+2}, 8, v{t+2}", f"v_lshl_add_u32 v{t+2}, v{t}, 4, v{t+2}",
      f"v_and_b32 v{t+1}, 1, v{t+1}", f"v_lshl_add_u32 v48, v{t+1}, 3, v{t+2}")
    S_X, S_XN, S_D, S_OUT, S_XC, S_FL = 64, 65, 66, 67, 68, 69
    p(f"s_lshl_b32 s37, s{S_WT}, 4", f"s_add_u32 s37, s37, s{S_KQ}", "s_lshl_b32 s37, s37, 13", f"s_lshl_b32 s{S_D}, s{S_NT}, 8",
      f"s_add_u32 s{S_X}, s37, s{S_D}", f"s_lshl_b32 s{S_OUT}, s{S_X}, 1",
      f"s_lshl_b32 s{S_XN}, s{S_WT}, 17", f"s_lshl_b32 s37, s{S_NT}, 14", f"s_add_u32 s{S_XN}, s{S_XN}, s37", f"s_lshl_b32 s37, s{S_KQ}, 10",
      f"s_add_u32 s{S_XN}, s{S_XN}, s37",
      f"s_lshl_b32 s37, s{S_WT}, 3", f"s_add_u32 s37, s37, s{S_NT}",
      f"s_mul_i32 s{S_XC}, s37, {4*3*8192}", f"s_add_u32 s{S_XC}, s{S_XC}, {WS_XC}",
      f"s_lshl_b32 s{S_FL}, s37, 8", f"s_add_u32 s{S_FL}, s{S_FL}, {WS_FL}")
    stamp(p, 2)

    Breg = lambda g, h=None: ar(A_B + (g % NBB) * 4, 4) if h is None else ar(A_B + (g % NBB) * 4 + 2 * h, 2)
    ACC = lambda b, j: V_ACC + (j * 8 + b) * 4

    def reads(s, n, g):
        st, sl = divmod(s, 4)
        slot = st % 4
        so = (slot & 1) * K2_SLOT
        if st < 4:
            return [f"ds_read_b128 {Breg(g)}, v{V_RS + 4*(slot>>1) + sl} offset:{so + n*4096}"]
        return [f"ds_read_b64_tr_b16 {Breg(g,h)}, v{V_RF + 8*(slot>>1) + n} offset:{so + sl*8192 + h*4096}" for h in range(2)]

    def mfma(s, n, j, g):
        d = vr(ACC(n, j), 4)
        return f"v_mfma_f32_16x16x32_bf16 {d}, {Breg(g)}, {Areg(s,j)}, {d if s else 0}"

    base_ops = []
    for b in range(8):
        base_ops.append(([], f"buffer_load_dwordx2 v[{V_X+2*b}:{V_X+2*b+1}], v39, s[56:59], s{S_X} offen offset:{b*32}", "base"))
        pre = [f"s_add_u32 s{S_XN}, s{S_XN}, 4096"] if b and b % 2 == 0 else []
        base_ops.append((pre, f"buffer_load_dwordx2 v[{V_XN+2*b}:{V_XN+2*b+1}], v48, s[4:7], s{S_XN} offen offset:{(b&1)*512}", "base"))
        base_ops.append(([], f"buffer_load_dwordx2 v[{V_D+2*b}:{V_D+2*b+1}], v49, s[60:63], s{S_D} offen offset:{b*32}", "base"))

    def vmops(s):
        st, sl = divmod(s, 4)
        d = dma_ops(st + 2)[2 * sl:2 * sl + 2] if st + 2 < 11 else []
        a = a_ops(s + DA) if s + DA < 44 else []
        if s >= 40:
            return base_ops[(s - 40) * 6:(s - 39) * 6]
        return d[:1] + a[:2] + d[1:] + a[2:]

    gemm(p, 44, 8, 4, reads, mfma, vmops, PF)
    stamp(p, 3)

    for j in range(1, 4):
        p(f"s_xor_b32 s37, s{S_KQ}, {j}", "s_mul_i32 s37, s37, 3", f"s_add_u32 s37, s37, {j-1}", "s_lshl_b32 s37, s37, 13",
          f"s_add_u32 s70, s37, s{S_XC}", "s_add_u32 s71, s70, 4096")
        for b in range(8):
            a = ACC(b, j)
            p.vm(f"buffer_store_dwordx4 v[{a}:{a+3}], v1, s[4:7], s{70 + b//4} offen offset:{(b%4)*1024} sc1")
    p("s_mov_b32 s72, 0xffff0000")
    p.wait(v=lambda x: x == "base")
    for b in range(8):
        for k, src in enumerate((V_X, V_XN, V_D)):
            for h in range(2):
                p(f"v_lshlrev_b32 v{112+4*k+2*h}, 16, v{src+2*b+h}", f"v_and_b32 v{112+4*k+2*h+1}, s72, v{src+2*b+h}")
        a = ACC(b, 0)
        p("v_pk_mul_f32 v[116:117], v[116:117], v[120:121]", "v_pk_mul_f32 v[118:119], v[118:119], v[122:123]",
          f"v_pk_add_f32 v[{a}:{a+1}], v[{a}:{a+1}], v[112:113]", f"v_pk_add_f32 v[{a+2}:{a+3}], v[{a+2}:{a+3}], v[114:115]",
          "v_cvt_pk_bf16_f32 v120, v116, v117", "v_cvt_pk_bf16_f32 v121, v118, v119",
          "v_lshlrev_b32 v116, 16, v120", "v_and_b32 v117, s72, v120", "v_lshlrev_b32 v118, 16, v121", "v_and_b32 v119, s72, v121",
          f"v_pk_add_f32 v[{a}:{a+1}], v[{a}:{a+1}], v[116:117]", f"v_pk_add_f32 v[{a+2}:{a+3}], v[{a+2}:{a+3}], v[118:119]")
    p(f"s_lshl_b32 s37, s{S_KQ}, 2", f"v_mov_b32 v{t}, s37", f"v_mov_b32 v{t+1}, {OOB}", "v_cmp_eq_u32 vcc, 0, v0", f"v_cndmask_b32 v{t}, v{t+1}, v{t}, vcc",
      f"v_mov_b32 v{t+1}, 1", f"v_mov_b32 v{t+2}, 0")
    p.wait(v=ALL)
    stamp(p, 4)
    p(f"buffer_store_dword v{t+1}, v{t}, s[4:7], s{S_FL} offen sc1")
    p("s_mov_b32 s37, 0x20000", "K2_POLL:",
      f"buffer_load_dwordx4 v[{t+4}:{t+7}], v{t+2}, s[4:7], s{S_FL} offen sc1", "s_waitcnt vmcnt(0)",
      f"v_min3_u32 v{t+4}, v{t+4}, v{t+5}, v{t+6}", f"v_min_u32 v{t+4}, v{t+4}, v{t+7}", f"v_cmp_eq_u32 vcc, 0, v{t+4}",
      "s_sub_u32 s37, s37, 1", "s_cbranch_scc1 K2_GOT", "s_nop 2", "s_cbranch_vccnz K2_POLL", "K2_GOT:")
    stamp(p, 5)
    p(f"s_mul_i32 s37, s{S_KQ}, {3*8192}", f"s_add_u32 s70, s37, s{S_XC}")
    for i in range(1, 6):
        p(f"s_add_u32 s{70+i}, s70, {i*4096}")
    for b in range(8):
        for j in range(1, 4):
            a = ACC(b, j)
            p.vm(f"buffer_load_dwordx4 v[{a}:{a+3}], v1, s[4:7], s{70 + (j-1)*2 + b//4} offen offset:{(b%4)*1024} sc1", b)
    for b in range(8):
        p.wait(v=lambda x: x == b)
        a = ACC(b, 0)
        for h in range(2):
            p(f"v_pk_add_f32 v[{a+2*h}:{a+2*h+1}], v[{a+2*h}:{a+2*h+1}], v[{ACC(b,1)+2*h}:{ACC(b,1)+2*h+1}]",
              f"v_pk_add_f32 v[{ACC(b,2)+2*h}:{ACC(b,2)+2*h+1}], v[{ACC(b,2)+2*h}:{ACC(b,2)+2*h+1}], v[{ACC(b,3)+2*h}:{ACC(b,3)+2*h+1}]")
        for h in range(2):
            p(f"v_pk_add_f32 v[{a+2*h}:{a+2*h+1}], v[{a+2*h}:{a+2*h+1}], v[{ACC(b,2)+2*h}:{ACC(b,2)+2*h+1}]")
        p.vm(f"buffer_store_dwordx4 v[{a}:{a+3}], v38, s[52:55], s{S_OUT} offen offset:{b*64} {OPT['out_st']}", "o")
    stamp(p, 6)
    stamp_store(p, 2, 4, S_W, 4, V_T)
    p("K2_END:", "s_endpgm")
    return p.L


def descriptor(name, vgpr, accum):
    return f""".amdhsa_kernel {name}
  .amdhsa_next_free_vgpr {vgpr}
  .amdhsa_next_free_sgpr 102
  .amdhsa_accum_offset {accum}
  .amdhsa_group_segment_fixed_size 0
  .amdhsa_kernarg_size 128
  .amdhsa_user_sgpr_count 2
  .amdhsa_user_sgpr_kernarg_segment_ptr 1
  .amdhsa_system_sgpr_workgroup_id_x 1
  .amdhsa_float_denorm_mode_32 3
.end_amdhsa_kernel
"""


def build():
    ref = open("cdna_kernels/" + NAME + ".s.ref").read().split("\n")
    head = [l for l in ref if l.startswith("; Kernarg") or l.startswith(";   offset")]
    kernels = [("ln_kernel", k0, 512, 16384, 64, 64), ("inproj_kernel", k1, 256, K1_LDS, 512, 256), (NAME + "_kernel", k2, 256, K2_LDS, 512, 256)]
    if "e" in str(OPT["order"]):
        kernels.append(("empty_kernel", lambda: ["s_endpgm"], 64, 0, 8, 8))
    out = list(head)
    for c in str(OPT["order"]):
        n, f, blk, lds, vg, acc = kernels[3 if c == "e" else int(c)]
        out.append(f"; @launch kernel={n} grid=(256,1,1) block=({blk},1,1) lds={lds}")
    out += ['.amdgcn_target "amdgcn-amd-amdhsa--gfx950"', ".text"]
    for n, f, blk, lds, vg, acc in kernels:
        body, added = fix_hazards(f())
        print(f"{n}: {len(body)} lines, {added} pads", file=sys.stderr)
        out += [f".globl {n}", ".p2align 8", f".type {n},@function", f"{n}:"]
        out += [l if l.endswith(":") else "    " + l for l in body]
    out += ['.section .rodata,"a"']
    for n, f, blk, lds, vg, acc in kernels:
        out += [".p2align 6", descriptor(n, vg, acc)]
    return "\n".join(out) + "\n"


if __name__ == "__main__":
    dst = sys.argv[1]
    for a in sys.argv[2:]:
        k, v = a.split("=", 1)
        assert k in OPT, k
        OPT[k] = int(v) if v.lstrip("-").isdigit() else v
    open(dst, "w").write(build())
```
